```python
import torch

def _softmax(x, axis=-1):
    return torch.softmax(x, dim=axis)
def _gelu(x):
    return torch.nn.functional.gelu(x, approximate="tanh")
def _silu(x):
    return torch.nn.functional.silu(x)
def _sigmoid(x):
    return torch.sigmoid(x)
def _layernorm(x, axis=-1, eps=1e-5):
    m = x.mean(dim=axis, keepdim=True)
    v = x.var(dim=axis, keepdim=True, unbiased=False)
    return (x - m) / torch.sqrt(v + eps)
def _scatter_add(tgt, idx, src, axis=0):
    return tgt.clone().index_add_(axis, idx, src)
def _segment_sum(src, seg, n):
    out = torch.zeros((n,) + src.shape[1:], dtype=src.dtype)
    return out.index_add_(0, seg, src)
def _pad(x, pw):
    flat = tuple(v for pair in reversed(pw) for v in pair)
    return torch.nn.functional.pad(x, flat)

kernel_name = 'parallel_sum__linear_attn_block__dense_activation_silu__prompt'

def setup_inputs():

    _w = (lambda a: (lambda t: t.to(torch.bfloat16) if t.is_floating_point() else t)(torch.as_tensor(a)))
    def _A_setup():
        B, S, D = 1, 2048, 512
        return {
            "x": _w((lambda *s: torch.randn(*s, dtype=torch.bfloat16) * 0.05)(B, S, D)),
            "wqkv": _w((lambda *s: torch.randn(*s, dtype=torch.bfloat16) * 0.1)(D, 3 * D)),
            "wo": _w((lambda *s: torch.randn(*s, dtype=torch.bfloat16) * 0.05)(D, D)),
        }
    _A_in = _A_setup()

    def _B_setup():
        B, S, D, F = 1, 2048, 512, 1792
        return {
            "x": _w((lambda *s: torch.randn(*s, dtype=torch.bfloat16) * 0.05)(B, S, D)),
            "w1": _w((lambda *s: torch.randn(*s, dtype=torch.bfloat16) * 0.8)(D, F) * (D ** -0.5)),
            "w2": _w((lambda *s: torch.randn(*s, dtype=torch.bfloat16) * 0.1)(F, D) * (F ** -0.5)),
        }
    _B_in = _B_setup()

    return {
        "A_x": _A_in["x"],
        "A_wqkv": _A_in["wqkv"],
        "A_wo": _A_in["wo"],
        "B_x": _B_in["x"],
        "B_w1": _B_in["w1"],
        "B_w2": _B_in["w2"],
    }

def reference(A_x, A_wqkv, A_wo, B_x, B_w1, B_w2):
    def _A_ref(x, wqkv, wo):
        B, S, D = x.shape
        H = 32; Dh = D // H
        qkv = (lambda x, *d: x.permute(*d))((x @ wqkv).reshape(B, S, 3, H, Dh), 2, 0, 3, 1, 4)
        q, k, v = qkv[0], qkv[1], qkv[2]
        phi = lambda t: torch.where(t > 0, t + 1, torch.exp(t)) + 1e-6
        pq, pk = phi(q), phi(k)
        kv = torch.einsum("bhsd,bhse->bhde", pk, v)
        z = torch.einsum("bhsd->bhd", pk)
        num = torch.einsum("bhqd,bhde->bhqe", pq, kv)
        den = torch.einsum("bhqd,bhd->bhq", pq, z)[..., None] + 1e-6
        o = num / den
        return (lambda x, *d: x.permute(*d))(o, 0, 2, 1, 3).reshape(B, S, D) @ wo

    def _B_ref(x, w1, w2):
        h = torch.einsum("bsd,df->bsf", x, w1)
        h = _silu(h)
        out = torch.einsum("bsf,fd->bsd", h, w2)
        return out

    x = A_x
    xn = _layernorm(x, axis=-1)
    return x + _A_ref(xn, A_wqkv, A_wo) + _B_ref(xn, B_w1, B_w2)
```

```python
import re, copy

_REG = re.compile(r'^(-|abs\()?([vas])(?:(\d+)|\[(\d+):(\d+)\])\)?$')
TRANS = ('v_exp_f32', 'v_rcp_f32', 'v_rsq_f32', 'v_log_f32', 'v_sqrt_f32')


def regs_of(op):
    op = op.strip()
    if op in ('vcc', 'exec'):
        return {op + '_lo', op + '_hi'}
    if op in ('vcc_lo', 'vcc_hi', 'exec_lo', 'exec_hi', 'm0'):
        return {op}
    m = _REG.match(op)
    if not m:
        return set()
    c = m.group(2)
    if m.group(3) is not None:
        return {c + m.group(3)}
    return {c + str(i) for i in range(int(m.group(4)), int(m.group(5)) + 1)}


class Ins:
    __slots__ = ('text', 'op', 'kind', 'w', 'r', 'states', 'srcc', 'data', 'ab')

    def __init__(self, text):
        self.text = text
        t = text.split(';')[0].strip()
        self.w, self.r, self.srcc, self.data, self.ab = set(), set(), set(), set(), set()
        self.states = 1
        if not t or t.endswith(':') or t.startswith('.'):
            self.op, self.kind, self.states = '', 'none', 0
            return
        parts = t.split(None, 1)
        op = self.op = parts[0]
        rest = parts[1] if len(parts) > 1 else ''
        ops, depth, cur = [], 0, ''
        for ch in rest:
            if ch == '[':
                depth += 1
            if ch == ']':
                depth -= 1
            if ch == ',' and depth == 0:
                ops.append(cur)
                cur = ''
            else:
                cur += ch
        ops.append(cur)
        last = ops[-1].split()
        mods = last[1:] if last else []
        if last:
            ops[-1] = last[0]
        R = [regs_of(o) for o in ops]
        allr = lambda a: set().union(*R[a:]) if R[a:] else set()
        if op.startswith('v_mfma'):
            self.kind = 'mfma'
            self.w = R[0]; self.r = allr(1); self.srcc = R[3]; self.ab = R[1] | R[2]
        elif op.startswith('v_'):
            self.kind = 'trans' if op.startswith(TRANS) else 'valu'
            self.w = set(R[0]); self.r = allr(1)
            if op.startswith('v_permlane'):
                self.w = R[0] | R[1]; self.r = R[0] | R[1]
            if op.startswith(('v_fmac', 'v_dot2c')):
                self.r |= R[0]
            if op.startswith('v_cndmask') and len(ops) == 3:
                self.r |= {'vcc_lo', 'vcc_hi'}
        elif op.startswith('ds_'):
            self.kind = 'ds'
            if op.startswith('ds_read'):
                self.w = R[0]; self.r = allr(1)
            else:
                self.r = allr(0)
        elif op.startswith(('buffer_', 'global_')):
            self.kind = 'vmem'
            if 'lds' in mods or 'load_lds' in op:
                self.r = allr(0) | {'m0'}
            elif 'load' in op:
                self.w = R[0]; self.r = allr(1)
            else:
                self.r = allr(0)
                if op.startswith('buffer_store') and op.endswith(('x3', 'x4')):
                    self.data = R[0]
        elif op.startswith(('s_load', 's_memtime', 's_memrealtime')):
            self.kind = 'smem'
            self.w = R[0]; self.r = allr(1)
        elif op == 's_nop':
            self.kind = 'salu'; self.states = int(ops[0], 0) + 1
        elif op.startswith(('s_waitcnt', 's_barrier', 's_branch', 's_cbranch', 's_endpgm', 's_sleep', 's_setprio')):
            self.kind = 'salu'
        elif op.startswith(('s_cmp', 's_bitcmp')):
            self.kind = 'salu'; self.r = allr(0)
        elif op.startswith('s_'):
            self.kind = 'salu'; self.w = set(R[0]); self.r = allr(1)
            if 'saveexec' in op:
                self.w |= {'exec_lo', 'exec_hi'}
        else:
            raise ValueError('unknown instruction: ' + text)


class Prog:
    def __init__(self):
        self.ins = []
        self.hist = []
        self.nvm = 0; self.vm_done = 0
        self.nlg = 0; self.lg_done = 0
        self.max_vm = 0; self.max_lg = 0

    def fork(self):
        p = Prog()
        p.hist = self.hist + self.ins
        p.nvm, p.vm_done, p.nlg, p.lg_done = self.nvm, self.vm_done, self.nlg, self.lg_done
        return p

    def __call__(self, text):
        tok = None
        for line in text.split('\n'):
            line = line.strip()
            if not line:
                continue
            i = Ins(line)
            if i.kind == 'ds' and self.nlg - self.lg_done >= 15:
                self('s_waitcnt lgkmcnt(11)')
            self.ins.append(i)
            if i.kind == 'vmem':
                tok = self.nvm; self.nvm += 1
                assert self.nvm - self.vm_done <= 63, 'vmcnt overflow at ' + line
            elif i.kind == 'ds':
                tok = self.nlg; self.nlg += 1
                assert self.nlg - self.lg_done <= 15, 'lgkmcnt overflow at ' + line
            elif i.op == 's_waitcnt':
                m = re.search(r'vmcnt\((\d+)\)', line)
                if m:
                    self.vm_done = max(self.vm_done, self.nvm - int(m.group(1)))
                m = re.search(r'lgkmcnt\((\d+)\)', line)
                if m:
                    self.lg_done = max(self.lg_done, self.nlg - int(m.group(1)))
        return tok

    def wait(self, vm=None, lg=None, force=False):
        s = []
        if vm is not None and (vm >= self.vm_done or force):
            s.append(f'vmcnt({self.nvm - vm - 1})')
        if lg is not None and (lg >= self.lg_done or force):
            s.append(f'lgkmcnt({self.nlg - lg - 1})')
        if s:
            self('s_waitcnt ' + ' '.join(s))

    def text(self):
        return '\n'.join(('' if i.kind == 'none' else '    ') + i.text for i in self.ins)

    def check(self, name=''):
        ins = [i for i in self.hist + self.ins if i.kind != 'none']
        errs = []
        isv = lambda i: i.kind in ('valu', 'trans')
        sg = lambda s: {x for x in s if x[0] == 's' or x.startswith('vcc')}
        for n, c in enumerate(ins):
            d = 0
            for m in range(n - 1, max(-1, n - 24), -1):
                p = ins[m]
                need = 0
                if isv(p):
                    if c.kind == 'mfma' and p.w & c.r: need = 2
                    if c.op.startswith('v_permlane') and p.w & c.r: need = 2
                    if '_dpp' in c.op and p.w & c.r: need = 2
                    if c.op.startswith(('v_readfirstlane', 'v_readlane')) and p.w & c.r: need = 1
                    if p.kind == 'trans' and c.kind == 'valu' and p.w & c.r: need = max(need, 1)
                    if p.op.startswith('v_dot2') and p.op != c.op and p.w & (c.r | c.w) and c.kind != 'salu': need = max(need, 3)
                    if sg(p.w) and isv(c) and sg(p.w) & c.r: need = max(need, 2)
                    if sg(p.w) and c.kind == 'vmem' and sg(p.w) & c.r: need = max(need, 5)
                if p.kind == 'mfma':
                    big = '32x32' in p.op
                    if c.kind == 'mfma':
                        if p.w & c.ab: need = 12 if big else 8
                        elif p.w & c.srcc and p.w != c.srcc: need = 10 if big else 6
                        elif p.w & c.w and not (p.w & c.srcc): need = 10 if big else 6
                    elif c.kind in ('valu', 'trans', 'vmem', 'ds') and p.w & (c.r | c.w): need = 12 if big else 8
                    if isv(c) and p.srcc & c.w: need = max(need, 7 if big else 3)
                if p.kind == 'salu' and 'm0' in p.w and c.kind == 'vmem' and 'm0' in c.r: need = 1
                if p.data and p.data & c.w: need = max(need, 2)
                if d < need:
                    errs.append(f'{name}: hazard need {need} have {d}: [{p.text}] -> [{c.text}]')
                d += p.states
        pend = {}
        nvm = nlg = 0
        for c in ins:
            if c.op == 's_waitcnt':
                mv = re.search(r'vmcnt\((\d+)\)', c.text)
                ml = re.search(r'lgkmcnt\((\d+)\)', c.text)
                for r, (k, t) in list(pend.items()):
                    if k == 'vm' and mv and t < nvm - int(mv.group(1)): del pend[r]
                    elif k == 'lg' and ml and t < nlg - int(ml.group(1)): del pend[r]
                    elif k == 'sm' and ml and int(ml.group(1)) == 0: del pend[r]
                continue
            bad = (c.r | c.w) & set(pend)
            if bad:
                errs.append(f'{name}: unwaited load result {sorted(bad)[:4]} touched by [{c.text}]')
            if c.kind == 'vmem':
                for r in c.w: pend[r] = ('vm', nvm)
                nvm += 1
            elif c.kind == 'ds':
                for r in c.w: pend[r] = ('lg', nlg)
                nlg += 1
            elif c.kind == 'smem':
                for r in c.w: pend[r] = ('sm', 0)
        return errs
```

```python
import sys, struct, os
sys.path.insert(0, os.path.dirname(os.path.abspath(__file__)))
from asmkit import Prog, Ins

NAME = 'parallel_sum__linear_attn_block__dense_activation_silu__prompt'
f32 = lambda x: '0x%08x' % struct.unpack('<I', struct.pack('<f', x))[0]
LOG2E, LN2 = 1.4426950408889634, 0.6931471805599453

WS_FH = 0x10000
WS_FO = 0x40000
WS_FKV = 0x50000
WS_Z = 0x60000
WS_C = 0x80000
WS_H = 0x100000
RG = 144 * 1024
WS_STAMP = 0xB00000
WS_SIZE = 0x1000000
OOB = 0x40000000
REGION = 40960
SPIN_MAX = 400000

sW = 3
SRD_X, SRD_W, SRD_W2, SRD_WO, SRD_WS, SRD_OUT, SRD_DBG = 4, 8, 12, 16, 20, 24, 28
sRB, sJ, sROLE, sRB2, sCB, sLDS, sTAG, sSTRIDE = 32, 33, 34, 35, 36, 37, 38, 39
sTAB = 40
sT0, sT1, sT2, sT3 = 48, 49, 50, 51
sONES, sMASK, sLN2, sPHC = 52, 53, 54, 55
sHST, sHST1, sFLAG, sW2B, sWOB, sHB, sSPIN, sXO = 56, 57, 58, 59, 60, 61, 62, 63
sKA = 64
sSEL = 82
sKVB, sKVF = 84, 85
sSTAMP = 64
srd = lambda b: f's[{b}:{b+3}]'

vLANE, vL16, vL16B, vWL, vWR = 1, 2, 3, 4, 5
vB = 6
vX = 10
vXR = 14
vP2 = 18
vFLG, vPOLL, vTAGV, vPV = 20, 21, 22, 23
vAB = 24
vTMP = 26
ACC = (32, 48)
vT = 64
XF = 128
aB = 0
aACC = 32

v = lambda b, n=1: f'v{b}' if n == 1 else f'v[{b}:{b+n-1}]'
a = lambda b, n=1: f'a{b}' if n == 1 else f'a[{b}:{b+n-1}]'
MF = 'v_mfma_f32_32x32x16_bf16'


class Cfg:
    stamps = False
    xla = 3
    hdepth = 2
    def __init__(self, **kw):
        self.__dict__.update(kw)


class Gen:
    def __init__(self, cfg):
        self.c = cfg
        self.tail = []
        self.nlab = 0
        self.stamp_names = {}

    def stamp(self, p, idx, name):
        if self.c.stamps:
            r = (sSTAMP + 2 * idx) if idx < 9 else (86 + 2 * (idx - 9))
            assert r + 1 <= 101
            p.ins.append(self.raw(f's_memtime s[{r}:{r+1}]'))
            self.stamp_names[idx] = name

    def raw(self, text):
        i = Ins('')
        i.text = '    ' + text
        return i

    def poll_issue(self, p, srdn, voff, soff):
        return p(f'buffer_load_dword {v(vPV)}, {v(voff)}, {srd(srdn)}, {soff} offen sc1')

    def poll_check(self, p, tok, srdn, voff, soff, nonzero=False):
        n = self.nlab; self.nlab += 1
        cmp = f'v_cmp_ne_u32 vcc, 0, {v(vPV)}' if nonzero else f'v_cmp_eq_u32 vcc, s{sTAG}, {v(vPV)}'
        p.wait(vm=tok)
        p(cmp)
        p('s_nop 1')
        p('s_cmp_eq_u64 vcc, -1')
        p(f's_cbranch_scc0 L_spin{n}')
        p(f'L_ok{n}:')
        self.tail += [f'L_spin{n}:', f'    s_mov_b32 s{sSPIN}, 0', f'L_spinl{n}:',
                      f'    buffer_load_dword {v(vPV)}, {v(voff)}, {srd(srdn)}, {soff} offen sc1',
                      f'    s_add_u32 s{sSPIN}, s{sSPIN}, 1',
                      f'    s_cmp_gt_u32 s{sSPIN}, {SPIN_MAX}',
                      '    s_waitcnt vmcnt(0)',
                      f'    s_cbranch_scc1 L_ok{n}',
                      '    ' + cmp, '    s_nop 1', '    s_cmp_eq_u64 vcc, -1',
                      f'    s_cbranch_scc0 L_spinl{n}', f'    s_branch L_ok{n}']

    def wdma(self, slot, s, right):
        return (f's_add_u32 m0, s{sLDS}, {slot*8192 + s*1024}',
                f'buffer_load_dwordx4 {v(vWR if right else vWL)}, {srd(SRD_W)}, s{sTAB+s} offen lds')

    def w2piece(self, pc):
        slot = (pc + 2) % 5
        out = []
        for half in range(2):
            if pc < 7:
                blk = ([6, 0, 1, 2, 3, 4, 5][pc], 7 + pc)[half]
                base, s_ = sW2B, SRD_W2
            else:
                blk = 2 * (pc - 7) + half
                base, s_ = sWOB, SRD_WO
            for i in range(4):
                pre = []
                if i == 0:
                    pre = [f's_add_u32 m0, s{sLDS}, {slot*8192 + half*4096}',
                           f's_add_u32 s{sT0}, s{base}, {blk*32*1024}']
                out.append((pre, f'buffer_load_dwordx4 {v(vX+i)}, {srd(s_)}, s{sT0} offen offset:{i*1024} lds'))
        return out

    def hloads(self, pc):
        out = []
        for half in range(2):
            if pc < 7:
                ks = 2 * ([6, 0, 1, 2, 3, 4, 5][pc], 7 + pc)[half]
                base = sHB
            else:
                ks = 4 * (pc - 7) + 2 * half
                base = sXO
            for s in range(2):
                for mh in range(2):
                    pre = [f's_add_u32 s{sT1}, s{base}, {ks*1024}'] if (s == 0 and mh == 0) else []
                    st = 2 * half + s
                    r = XF + (pc % 4) * 32 + st * 8 + mh * 4
                    out.append((pre, f'buffer_load_dwordx4 {v(r,4)}, {v(vL16B if mh else vL16)}, {srd(SRD_WS)}, s{sT1} offen offset:{s*1024} sc1', 4 * pc + st))
        return out

    def prologue(self, p):
        c = self.c
        p(f'''s_cmp_lt_u32 s2, 256
              s_cbranch_scc1 L_go
              s_endpgm
              L_go:
              s_load_dwordx16 s[{sKA}:{sKA+15}], s[0:1], 0
              s_load_dwordx2 s[{sKA+16}:{sKA+17}], s[0:1], 64''')
        if c.stamps:
            p.ins.append(self.raw('s_memrealtime s[98:99]'))
            p.ins.append(self.raw('s_memtime s[96:97]'))
        p(f'''v_lshrrev_b32 {v(vTMP)}, 6, v0
              v_and_b32 {v(vLANE)}, 63, v0
              v_readfirstlane_b32 s{sW}, {v(vTMP)}
              s_and_b32 s{sT0}, s2, 7            ; xcd
              s_lshr_b32 s{sT1}, s2, 3           ; slot
              s_lshr_b32 s{sT2}, s{sT0}, 2
              s_lshl_b32 s{sT2}, s{sT2}, 3
              s_and_b32 s{sCB}, s{sT1}, 7
              s_add_u32 s{sRB}, s{sT2}, s{sCB}
              s_lshr_b32 s{sT2}, s{sT1}, 3       ; t
              s_lshr_b32 s{sROLE}, s{sT2}, 1
              s_and_b32 s{sT3}, s{sT0}, 3
              s_lshl_b32 s{sT3}, s{sT3}, 1
              s_and_b32 s{sJ}, s{sT2}, 1
              s_add_u32 s{sJ}, s{sJ}, s{sT3}
              s_lshl_b32 s{sRB2}, s{sT0}, 2
              s_add_u32 s{sRB2}, s{sRB2}, s{sT2}
              s_mul_i32 s{sLDS}, s{sW}, {REGION}''')
        t0, t1, t2 = vTMP, vTMP + 1, vTMP + 2
        p(f'''v_lshrrev_b32 {v(t0)}, 3, {v(vLANE)}      ; rr
              v_and_b32 {v(t1)}, 7, {v(vLANE)}          ; pos
              v_lshrrev_b32 {v(t2)}, 4, {v(vLANE)}      ; rr>>1
              v_xor_b32 {v(t1)}, {v(t1)}, {v(t2)}
              v_lshlrev_b32 {v(t1)}, 4, {v(t1)}
              v_lshl_add_u32 {v(vX)}, {v(t0)}, 10, {v(t1)}
              v_xor_b32 {v(t1)}, 64, {v(vX)}
              v_add_u32 {v(vX+1)}, 7168, {v(t1)}
              v_add_u32 {v(vX+2)}, {2*7168}, {v(vX)}
              v_add_u32 {v(vX+3)}, {3*7168}, {v(t1)}
              s_lshl_b32 s{sT0}, s{sRB}, 2
              s_add_u32 s{sT0}, s{sT0}, s{sW}
              s_lshl_b32 s{sXO}, s{sT0}, 15
              s_mul_i32 s{sHST}, s{sT0}, {RG}
              s_lshl_b32 s{sSTRIDE}, s{sROLE}, 9
              s_add_u32 s{sSTRIDE}, s{sSTRIDE}, 3072
              s_waitcnt lgkmcnt(0)
              s_mov_b32 s{SRD_X}, s{sKA}
              s_and_b32 s{SRD_X+1}, s{sKA+1}, 0xffff
              s_mov_b32 s{SRD_X+2}, 0x200000
              s_mov_b32 s{SRD_X+3}, 0x20000''')
        xtok = {}

        def xdma(ch):
            p(f's_add_u32 m0, s{sLDS}, {8192 + ch*4096}')
            p(f's_add_u32 s{sT0}, s{sXO}, {ch*128}')
            for rg in range(4):
                xtok[ch] = p(f'buffer_load_dwordx4 {v(vX+rg)}, {srd(SRD_X)}, s{sT0} offen offset:{rg*1024} lds')
        for ch in range(c.xla):
            xdma(ch)
        p(f'''s_load_dword s{sTAG}, s[{sKA+16}:{sKA+17}], 0
              s_cmp_eq_u32 s{sROLE}, 0
              s_cselect_b32 s{SRD_W}, s{sKA+2}, s{sKA+8}
              s_cselect_b32 s{SRD_W+1}, s{sKA+3}, s{sKA+9}
              s_and_b32 s{SRD_W+1}, s{SRD_W+1}, 0xffff
              s_lshl_b32 s{SRD_W+2}, s{sSTRIDE}, 9
              s_mov_b32 s{SRD_W+3}, 0x20000''')
        for d, k, n in ((SRD_W2, 10, 1792 * 1024), (SRD_WO, 4, 512 * 1024), (SRD_WS, 16, WS_SIZE),
                        (SRD_OUT, 12, 0x200000), (SRD_DBG, 14, 256)):
            p(f'''s_mov_b32 s{d}, s{sKA+k}
                  s_and_b32 s{d+1}, s{sKA+k+1}, 0xffff
                  s_mov_b32 s{d+2}, {n}
                  s_mov_b32 s{d+3}, 0x20000''')
        p(f'''s_lshl_b32 s{sT0}, s{sSTRIDE}, 4
              s_lshl_b32 s{sT1}, s{sW}, 3
              s_mul_i32 s{sTAB}, s{sT0}, s{sT1}''')
        for s in range(1, 8):
            p(f's_add_u32 s{sTAB+s}, s{sTAB+s-1}, s{sT0}')
        p(f'''s_and_b32 s{sT0}, s{sJ}, 1
              s_cmp_eq_u32 s{sT0}, 0
              s_cselect_b32 s{sT1}, 384, 0
              s_mul_i32 s{sT2}, s{sJ}, 448
              s_add_u32 s{sT2}, s{sT2}, s{sT1}
              s_lshl_b32 s{sT3}, s{sJ}, 7
              s_add_u32 s{sT3}, s{sT3}, 1024
              s_cmp_eq_u32 s{sROLE}, 0
              s_cselect_b32 s{sT2}, s{sT3}, s{sT2}
              v_lshrrev_b32 {v(t0)}, 2, {v(vLANE)}
              v_mul_lo_u32 {v(t0)}, {v(t0)}, s{sSTRIDE}
              v_and_b32 {v(t1)}, 3, {v(vLANE)}
              v_lshl_add_u32 {v(t0)}, {v(t1)}, 4, {v(t0)}
              v_add_u32 {v(vWL)}, s{sT2}, {v(t0)}
              v_lshlrev_b32 {v(vL16)}, 4, {v(vLANE)}
              v_add_u32 {v(vL16B)}, {RG}, {v(vL16)}''')
        p(f'''v_and_b32 {v(t0)}, 31, {v(vLANE)}          ; r
              v_lshlrev_b32 {v(t1)}, 7, {v(t0)}          ; r*128
              v_add_u32 {v(t1)}, s{sLDS}, {v(t1)}
              v_add_u32 {v(t1)}, 8192, {v(t1)}
              v_bfe_u32 {v(t0)}, {v(vLANE)}, 1, 3        ; (r>>1)&7
              v_lshrrev_b32 {v(t2)}, 5, {v(vLANE)}       ; hh
              v_xor_b32 {v(t0)}, {v(t0)}, {v(t2)}''')
        for i in range(4):
            p(f'''v_xor_b32 {v(t2)}, {2*i}, {v(t0)}
                  v_lshl_add_u32 {v(vXR+i)}, {v(t2)}, 4, {v(t1)}''')
        p(f'''v_lshrrev_b32 {v(t0)}, 5, {v(vLANE)}
              v_lshlrev_b32 {v(t0)}, 9, {v(t0)}
              v_bfe_u32 {v(t1)}, {v(vLANE)}, 2, 2
              v_lshl_add_u32 {v(t0)}, {v(t1)}, 6, {v(t0)}
              v_bfe_u32 {v(t1)}, {v(vLANE)}, 4, 1
              v_lshl_add_u32 {v(t0)}, {v(t1)}, 5, {v(t0)}
              v_and_b32 {v(t1)}, 3, {v(vLANE)}
              v_lshl_add_u32 {v(vB)}, {v(t1)}, 3, {v(t0)}
              v_add_u32 {v(vB+1)}, {REGION}, {v(vB)}
              v_add_u32 {v(vB+2)}, {2*REGION}, {v(vB)}
              v_add_u32 {v(vB+3)}, {3*REGION}, {v(vB)}''')
        p(f'''v_lshrrev_b32 {v(t0)}, 5, {v(vLANE)}
              v_lshlrev_b32 {v(t0)}, 9, {v(t0)}
              v_bfe_u32 {v(t1)}, {v(vLANE)}, 2, 2
              v_lshl_add_u32 {v(t0)}, {v(t1)}, 7, {v(t0)}
              v_bfe_u32 {v(t1)}, {v(vLANE)}, 3, 1
              v_lshl_add_u32 {v(t0)}, {v(t1)}, 6, {v(t0)}
              v_bfe_u32 {v(t1)}, {v(vLANE)}, 4, 1
              v_lshl_add_u32 {v(t0)}, {v(t1)}, 5, {v(t0)}
              v_and_b32 {v(t1)}, 3, {v(vLANE)}
              v_lshl_add_u32 {v(t0)}, {v(t1)}, 3, {v(t0)}
              v_xor_b32 {v(t1)}, 64, {v(t0)}
              v_add_u32 {v(vP2)}, s{sLDS}, {v(t0)}
              v_add_u32 {v(vP2+1)}, s{sLDS}, {v(t1)}''')
        p(f'''v_mov_b32 {v(t0)}, {OOB}
              v_cmp_eq_u32 vcc, 0, {v(vLANE)}
              s_mov_b32 s{sONES}, 0x3f803f80
              s_mov_b32 s{sMASK}, 0xffff0000
              v_cndmask_b32 {v(vFLG)}, {v(t0)}, {v(vLANE)}, vcc
              s_mov_b32 s{sLN2}, {f32(LN2)}
              s_mov_b32 s{sPHC}, {f32(1e-6/LN2)}
              s_mov_b32 s{sSEL}, 0x0000ffff
              s_mov_b32 s{sSEL+1}, 0x0000ffff
              s_lshl_b32 s{sT0}, s{sCB}, 7
              s_mul_i32 s{sW2B}, s{sW}, {448*1024}
              s_add_u32 s{sW2B}, s{sW2B}, s{sT0}
              s_lshl_b32 s{sWOB}, s{sW}, 17
              s_add_u32 s{sWOB}, s{sWOB}, s{sT0}
              s_add_u32 s{sHST}, s{sHST}, {WS_H}
              s_lshl_b32 s{sT0}, s{sRB}, 3
              s_add_u32 s{sT0}, s{sT0}, s{sJ}
              s_lshl_b32 s{sT0}, s{sT0}, 2
              s_add_u32 s{sT0}, s{sT0}, s{sW}
              s_lshl_b32 s{sFLAG}, s{sT0}, 7
              s_mul_i32 s{sHB}, s{sRB2}, {2*RG}
              s_add_u32 s{sHB}, s{sHB}, {WS_H}''')
        p(f'''s_lshr_b32 s{sT0}, s{sRB2}, 1
              s_lshl_b32 s{sT0}, s{sT0}, 2
              s_add_u32 s{sT0}, s{sT0}, s{sW}
              s_lshl_b32 s{sT0}, s{sT0}, 2
              s_and_b32 s{sT1}, s{sRB2}, 1
              s_add_u32 s{sT0}, s{sT0}, s{sT1}
              s_lshl_b32 s{sT0}, s{sT0}, 8
              v_lshrrev_b32 {v(t0)}, 5, {v(vLANE)}
              v_lshlrev_b32 {v(t0)}, 9, {v(t0)}
              v_bfe_u32 {v(t1)}, {v(vLANE)}, 4, 1
              v_lshl_add_u32 {v(t0)}, {v(t1)}, 7, {v(t0)}
              v_add_u32 {v(vPOLL)}, s{sT0}, {v(t0)}''')
        p(f'''s_waitcnt lgkmcnt(0)
              s_mul_i32 s{sTAG}, s{sTAG}, 1664525
              s_add_u32 s{sTAG}, s{sTAG}, 1013904221
              s_or_b32 s{sTAG}, s{sTAG}, 1
              s_or_b32 s{sT0}, s2, s{sW}
              s_cmp_eq_u32 s{sT0}, 0
              s_cselect_b32 s{sT0}, 0, {OOB}
              v_mov_b32 {v(vTAGV)}, s{sTAG}
              v_or_b32 {v(t0)}, s{sT0}, {v(vFLG)}
              buffer_store_dword {v(vTAGV)}, {v(t0)}, {srd(SRD_DBG)}, 0 offen sc1
              buffer_store_dword {v(vTAGV)}, {v(t0)}, {srd(SRD_WS)}, 0 offen sc1''')
        self.stamp(p, 0, 'setup done')
        S = vT
        for i in range(8):
            p(f'v_mov_b32 {v(S+i)}, 0')

        def stats(ch):
            for t in range(4 * ch, 4 * ch + 4):
                for i in range(4):
                    p(f'v_dot2c_f32_bf16 {v(S+i)}, s{sONES}, {v(XF+4*t+i)}')
                for i in range(4):
                    p(f'v_dot2c_f32_bf16 {v(S+4+i)}, {v(XF+4*t+i)}, {v(XF+4*t+i)}')
        rtok = {}
        g0 = [self.wdma(0, s, False) for s in range(8)]
        extra = 0
        for ch in range(8):
            p.wait(vm=xtok[ch])
            if ch == 0:
                self.stamp(p, 1, 'x chunk0')
            for i in range(4):
                rtok[ch] = p(f'ds_read_b128 {v(XF+16*ch+4*i,4)}, {v(vXR+i)} offset:{ch*4096}')
            if ch + c.xla < 8:
                xdma(ch + c.xla)
            else:
                n = 8 if ch == 7 else min(8, extra + 4)
                for s in range(extra, n):
                    p(g0[s][0]); p('s_nop 0'); self.g0tok = p(g0[s][1])
                extra = n
            if ch > 0:
                p.wait(lg=rtok[ch - 1])
                stats(ch - 1)
        p.wait(lg=rtok[7])
        self.stamp(p, 2, 'x in regs')
        stats(7)
        p(f'''v_lshrrev_b32 {v(t0)}, 3, {v(vLANE)}
              v_and_b32 {v(t1)}, 7, {v(vLANE)}
              v_bfe_u32 {v(t2)}, {v(vLANE)}, 4, 1
              v_lshlrev_b32 {v(t2)}, 2, {v(t2)}
              v_xor_b32 {v(t1)}, {v(t1)}, {v(t2)}
              v_lshlrev_b32 {v(t1)}, 4, {v(t1)}
              v_lshl_add_u32 {v(vX)}, {v(t0)}, 10, {v(t1)}
              v_add_u32 {v(vX+1)}, 7168, {v(vX)}
              v_add_u32 {v(vX+2)}, {2*7168}, {v(vX)}
              v_add_u32 {v(vX+3)}, {3*7168}, {v(vX)}''')
        p(f'''v_add_f32 {v(S)}, {v(S)}, {v(S+1)}
              v_add_f32 {v(S+2)}, {v(S+2)}, {v(S+3)}
              v_add_f32 {v(S+4)}, {v(S+4)}, {v(S+5)}
              v_add_f32 {v(S+6)}, {v(S+6)}, {v(S+7)}
              v_add_f32 {v(S)}, {v(S)}, {v(S+2)}
              v_add_f32 {v(S+4)}, {v(S+4)}, {v(S+6)}
              v_mov_b32 {v(S+1)}, {v(S)}
              v_mov_b32 {v(S+5)}, {v(S+4)}
              s_lshl_b32 s{sT0}, s{sROLE}, 31
              s_or_b32 s{sT0}, s{sT0}, {f32(LOG2E)}
              v_permlane32_swap_b32 {v(S)}, {v(S+1)}
              v_permlane32_swap_b32 {v(S+4)}, {v(S+5)}
              v_add_f32 {v(S)}, {v(S)}, {v(S+1)}
              v_add_f32 {v(S+4)}, {v(S+4)}, {v(S+5)}
              v_mul_f32 {v(S)}, {f32(1/512)}, {v(S)}           ; mean
              v_mul_f32 {v(S+4)}, {f32(1/512)}, {v(S+4)}
              v_fma_f32 {v(S+4)}, -{v(S)}, {v(S)}, {v(S+4)}    ; variance
              v_max_f32 {v(S+4)}, 0, {v(S+4)}
              v_add_f32 {v(S+4)}, {f32(1e-5)}, {v(S+4)}
              v_rsq_f32 {v(S+4)}, {v(S+4)}
              s_lshl_b32 s{sXO}, s{sW}, 13
              v_mul_f32 {v(vAB)}, s{sT0}, {v(S+4)}
              v_mul_f32_e64 {v(vAB+1)}, -{v(S)}, {v(vAB)}
              s_add_u32 s{sXO}, s{sXO}, s{sHB}
              s_add_u32 s{sXO}, s{sXO}, {112*1024}
              s_mul_i32 s{sT0}, s{sW}, {28*1024}
              s_add_u32 s{sHB}, s{sHB}, s{sT0}
              s_cmp_eq_u32 s{sROLE}, 0
              s_cbranch_scc1 L_attn''')

    def normalize(self, p, dmas):
        toks = []
        T = vT + 8
        for t in range(32):
            if t < len(dmas):
                pre, mem, post = dmas[t]
                p(pre); p('s_nop 0'); toks.append(p(mem))
                if post:
                    p(post)
                else:
                    p('s_nop 0')
            for i in range(4):
                r = XF + 4 * t + i
                p(f'v_lshlrev_b32 {v(T+2*i)}, 16, {v(r)}')
                p(f'v_and_b32 {v(T+2*i+1)}, s{sMASK}, {v(r)}')
            for i in range(4):
                p(f'v_pk_fma_f32 {v(T+2*i,2)}, {v(T+2*i,2)}, {v(vAB,2)}, {v(vAB,2)} op_sel:[0,0,1] op_sel_hi:[1,0,1]')
            for i in range(4):
                p(f'v_cvt_pk_bf16_f32 {v(XF+4*t+i)}, {v(T+2*i)}, {v(T+2*i+1)}')
        return toks

    def bread(self, p, g, t):
        slot = g % 5
        q = aB + 4 * (t % 8)
        off = slot * 8192 + (t & 7) * 1024
        p(f'ds_read_b64_tr_b16 {a(q,2)}, {v(vB + (t>>3))} offset:{off}')
        self.btok[(g, t)] = p(f'ds_read_b64_tr_b16 {a(q+2,2)}, {v(vB + (t>>3))} offset:{off+256}')

    def group(self, p, g, transposed, last, gaps):
        acc = ACC[g % 2]

        def run(items):
            for it in items:
                if callable(it):
                    it(p)
                else:
                    p(it)
        for t in range(32):
            gp = gaps[t]
            run(gp['pre'])
            w, x = a(aB + 4 * (t % 8), 4), v(XF + 4 * t, 4)
            A_, B_ = (w, x) if transposed else (x, w)
            p(f'{MF} {v(acc,16)}, {A_}, {B_}, {v(acc,16) if t else 0}')
            run(gp['mem'])
            if t + 7 < 32:
                self.bread(p, g, t + 7)
            elif not last:
                self.bread(p, g + 1, t + 7 - 32)
            if t % 4 == 3:
                if t + 4 < 32:
                    p.wait(lg=self.btok[(g, t + 4)])
                elif not last:
                    p.wait(lg=self.btok[(g + 1, 3)])
            run(gp['valu'])

    def newgaps(self, n=32):
        return [dict(pre=[], mem=[], valu=[]) for _ in range(n)]

    def spread(self, gaps, ops, g0, g1):
        total = sum(o[1] for o in ops if o[0] != 'MEM')
        n = g1 - g0 + 1
        done = 0
        for o in ops:
            if o[0] == 'MEM':
                gi = min(g0 + int(max(done - 1, 0) * n / total), g1) + 1
                gaps[gi]['mem'].append(o[1])
                continue
            gi = min(g0 + int((done + o[1] / 2) * n / total), g1)
            gaps[gi]['valu'].append(o[0])
            done += o[1]

    def place_dmas(self, gl, start, items, per=1, rec=None, key=None):
        gi = start
        for n, (pre, mem) in enumerate(items):
            first = (n % per == 0)
            if isinstance(pre, str):
                pre = [pre]
            if first:
                gl[gi]['pre'] += pre
            else:
                gl[gi]['mem'] += pre + (['s_nop 0'] if len(pre) == 1 else [])

            def f(p, mem=mem):
                tok = p(mem)
                if rec is not None:
                    rec[key] = tok
            gl[gi]['mem'].append(f)
            if n % per == per - 1:
                gi += 1

    def silu_ops(self, g, storefn):
        acc = ACC[g % 2]
        T, O = vT, vT + 8
        ops = []
        for n in range(-2, 18):
            if 0 <= n + 2 < 16: ops.append((f'v_exp_f32 {v(T+(n+2)%5)}, {v(acc+n+2)}', 8))
            if 0 <= n + 1 < 16: ops.append((f'v_add_f32 {v(T+(n+1)%5)}, 1.0, {v(T+(n+1)%5)}', 4))
            if 0 <= n < 16: ops.append((f'v_rcp_f32 {v(T+n%5)}, {v(T+n%5)}', 8))
            if 0 <= n - 1 < 16: ops.append((f'v_mul_f32 {v(acc+n-1)}, {v(acc+n-1)}, {v(T+(n-1)%5)}', 4))
            m = n - 2
            if 0 <= m < 16 and m % 2 == 1:
                ops.append((f'v_cvt_pk_bf16_f32 {v(O+m//2)}, {v(acc+m-1)}, {v(acc+m)}', 4))
                if m % 8 == 7:
                    ops.append(('MEM', storefn(m // 8, O + 4 * (m // 8))))
        return ops

    def phi_ops(self, g, O, zreg=None):
        acc = ACC[g % 2]
        T = vT
        ops = []
        for n in range(-1, 18):
            if 0 <= n + 1 < 16:
                ops.append((f'v_exp_f32_e64 {v(T+(n+1)%6)}, {v(acc+n+1)} clamp', 8))
                ops.append((f'v_max_f32 {v(acc+n+1)}, s{sPHC}, {v(acc+n+1)}', 4))
            if 0 <= n < 16:
                ops.append((f'v_fmac_f32 {v(T+n%6)}, s{sLN2}, {v(acc+n)}', 4))
            m = n - 1
            if 0 <= m < 16 and m % 2 == 1:
                ops.append((f'v_cvt_pk_bf16_f32 {v(O+m//2)}, {v(T+(m-1)%6)}, {v(T+m%6)}', 4))
                if zreg is not None:
                    if m == 1:
                        ops.append((f'v_add_f32 {v(zreg)}, {v(T+(m-1)%6)}, {v(T+m%6)}', 4))
                    else:
                        ops.append((f'v_add_f32 {v(zreg)}, {v(zreg)}, {v(T+(m-1)%6)}', 4))
                        ops.append((f'v_add_f32 {v(zreg)}, {v(zreg)}, {v(T+m%6)}', 4))
        return ops

    def flag_store(self, p, tok, base, soff=sFLAG):
        p.wait(vm=tok)
        p(f's_add_u32 s{sT2}, s{soff}, {base}')
        p(f'buffer_store_dword {v(vTAGV)}, {v(vFLG)}, {srd(SRD_WS)}, s{sT2} offen sc1')

    def get_tag_issue(self, p):
        p(f'v_mov_b32 {v(vTMP)}, 0')
        self.tagtok = self.poll_issue(p, SRD_DBG, vTMP, 0)

    def get_tag_check(self, p):
        self.poll_check(p, self.tagtok, SRD_DBG, vTMP, 0, nonzero=True)
        p(f'v_readfirstlane_b32 s{sTAG}, {v(vPV)}')
        p(f'v_mov_b32 {v(vTAGV)}, {v(vPV)}')

    def start_p1(self, p):
        self.btok = {}
        p.wait(vm=self.g0tok)
        p('s_barrier')
        for t in range(7):
            self.bread(p, 0, t)
        p.wait(lg=self.btok[(0, 3)])

    def barrier_at(self, gp, tokfn):
        def f(p):
            t = tokfn()
            if t is not None:
                p.wait(vm=t)
            p('s_barrier')
        gp['pre'].append(f)

    def ffn(self, p):
        c = self.c
        R = {}
        p(f'''s_and_b32 s{sT0}, s{sJ}, 1
              s_cmp_eq_u32 s{sT0}, 0
              s_cselect_b32 s{sT1}, -384, 64
              v_add_u32 {v(vWL)}, s{sT1}, {v(vWL)}
              v_add_u32 {v(vWR)}, 64, {v(vWL)}
              s_cselect_b32 s{sT1}, {12*1024}, 0
              s_cselect_b32 s{sT2}, 0, {2*1024}
              s_mul_i32 s{sT0}, s{sJ}, {14*1024}
              s_add_u32 s{sHST}, s{sHST}, s{sT0}
              s_add_u32 s{sHST1}, s{sHST}, s{sT2}
              s_add_u32 s{sHST}, s{sHST}, s{sT1}''')
        dm = []
        for u in range(2):
            for s in range(8):
                for r in range(2):
                    pre, mem = self.wdma(1 + 2 * u + r, s, r)
                    post = None
                    if s == 7:
                        post = f'v_add_u32 {v(vWR if r else vWL)}, 128, {v(vWR if r else vWL)}'
                    dm.append((pre, mem, post))
        toks = self.normalize(p, dm)
        R['u0'], R['u1'] = toks[15], toks[31]
        self.get_tag_issue(p)
        self.stamp(p, 3, 'normalized')
        self.start_p1(p)
        self.stamp(p, 4, 'p1 start')
        gl = self.newgaps(7 * 32 + 1)
        G = lambda g: gl[32 * g:32 * g + 32]

        def storefn(g):
            def mk(s, reg):
                def f(p):
                    if g >= 1 and g % 2 == 1 and s == 0 and g > 1:
                        p(f's_add_u32 s{sHST1}, s{sHST1}, 4096')
                    so, off = (sHST, s * 1024) if g == 0 else (sHST1, ((g - 1) % 2) * 2048 + s * 1024)
                    R[('st', g)] = p(f'buffer_store_dwordx4 {v(reg,4)}, {v(vL16)}, {srd(SRD_WS)}, s{so} offen offset:{off} sc1')
                return f
            return mk
        for g in range(1, 7):
            self.spread(G(g), self.silu_ops(g - 1, storefn(g - 1)), 4, 27)
        self.barrier_at(gl[24], lambda: R['u0'])
        gl[26]['valu'].append(self.get_tag_check)
        self.barrier_at(gl[32 + 28], lambda: R['u1'])
        u2 = []
        for s in range(8):
            for r in range(2):
                u2.append(self.wdma(r, s, r))
        self.place_dmas(gl, 32 + 28, u2, per=2, rec=R, key='u2')
        for g in range(2, 7):
            self.barrier_at(gl[32 * g + 28], (lambda: R['u2']) if g == 3 else (lambda: None))
            per = 2 if g == 6 else 1
            self.place_dmas(gl, 32 * g + 28, self.w2piece(g - 2), per=per, rec=R, key=('w2', g - 2))
        gl[32 * 5 + 26]['mem'].append(lambda p: self.flag_store(p, R[('st', 3)], WS_FH))
        gl[32 * 6 + 26]['mem'].append(lambda p: self.flag_store(p, R[('st', 4)], WS_FH + 0x10000))

        def pollA(p):
            p(f's_mov_b32 s{sT3}, {WS_FH}')
            R['pa'] = self.poll_issue(p, SRD_WS, vPOLL, f's{sT3}')
        gl[32 * 6 + 12]['mem'].append(pollA)
        for g in range(7):
            self.group(p, g, True, g == 6, G(g))
            if g == 0: self.stamp(p, 5, 'g0 done')
            if g == 3: self.stamp(p, 6, 'g3 done')
        self.stamp(p, 7, 'p1 mfma done')
        self.poll_check(p, R['pa'], SRD_WS, vPOLL, f's{sT3}')
        self.stamp(p, 8, 'flag A ok')
        htok = {}
        pend = []
        for pc in range(c.hdepth):
            pend += self.hloads(pc)
        ops = self.silu_ops(6, storefn(6))
        every = max(1, len(ops) // (len(pend) + 1))
        for n in range(4):
            pre, mem, st = pend.pop(0)
            for x in pre: p(x)
            htok[st] = p(mem)
        p('s_nop 3')
        for n, o in enumerate(ops):
            if o[0] == 'MEM':
                o[1](p)
            else:
                p(o[0])
            if n % every == every - 1 and pend:
                pre, mem, st = pend.pop(0)
                for x in pre: p(x)
                htok[st] = p(mem)
        for pre, mem, st in pend:
            for x in pre: p(x)
            htok[st] = p(mem)
        hooks = {3: lambda p: self.flag_store(p, R[('st', 6)], WS_FH + 0x20000)}
        self.phase2(p, R, htok, hooks)

    def attn(self, p):
        c = self.c
        R = {}
        PK = (vT + 8, vT + 16)
        VP = vT + 24
        KV = vT + 32
        CS = vT + 48
        Z = (vT + 56, vT + 57)
        SCR = 8192
        vSW, vSR, vZO, vKP = vXR, vXR + 1, vXR + 2, vXR + 3
        t0, t1 = vTMP + 1, vTMP + 2
        p(f'''v_add_u32 {v(vWR)}, 64, {v(vWL)}
              v_add_u32 {v(vWL)}, 1024, {v(vWL)}
              s_lshl_b32 s{sT0}, s{sJ}, 12
              s_add_u32 s{sHST}, s{sHST}, s{sT0}
              s_add_u32 s{sHST}, s{sHST}, {112*1024}
              s_lshl_b32 s{sT0}, s{sJ}, 2
              s_add_u32 s{sT0}, s{sT0}, s{sW}
              s_lshl_b32 s{sKVB}, s{sT0}, 4                 ; (ja*4+q)*16
              s_add_u32 s{sKVF}, s{sKVB}, s{sRB}
              s_lshl_b32 s{sKVF}, s{sKVF}, 7
              v_add_u32 {v(vSW)}, s{sLDS}, {v(vL16)}
              s_lshl_b32 s{sT0}, s{sW}, 10
              v_add_u32 {v(vSR)}, s{sT0}, {v(vL16)}
              v_lshrrev_b32 {v(t0)}, 4, {v(vLANE)}
              v_cmp_eq_u32 vcc, s{sW}, {v(t0)}
              v_and_b32 {v(t0)}, 15, {v(vLANE)}
              v_lshlrev_b32 {v(t0)}, 2, {v(t0)}
              v_mov_b32 {v(t1)}, {OOB}
              v_cndmask_b32 {v(vZO)}, {v(t1)}, {v(t0)}, vcc
              s_lshl_b32 s{sT0}, s{sKVB}, 7
              v_lshrrev_b32 {v(t0)}, 2, {v(vLANE)}
              v_lshlrev_b32 {v(t0)}, 7, {v(t0)}
              v_add_u32 {v(vKP)}, s{sT0}, {v(t0)}''')
        dm = []
        for s in range(8):
            pre, mem = self.wdma(1, s, True)
            dm.append((pre, mem, f'v_add_u32 {v(vWR)}, 1024, {v(vWR)}' if s == 7 else None))
        for s in range(8):
            for r in range(2):
                pre, mem = self.wdma(2 + r, s, r)
                dm.append((pre, mem, f'v_subrev_u32 {v(vWR if r else vWL)}, 2048, {v(vWR if r else vWL)}' if s == 7 else None))
        toks = self.normalize(p, dm)
        R['k1'], R['v'] = toks[7], toks[23]
        self.get_tag_issue(p)
        self.stamp(p, 3, 'normalized')
        self.start_p1(p)
        self.stamp(p, 4, 'p1 start')
        gl = self.newgaps(6 * 32 + 1)
        G = lambda g: gl[32 * g:32 * g + 32]
        self.spread(G(1), self.phi_ops(0, PK[0], Z[0]), 4, 27)
        self.spread(G(2), self.phi_ops(1, PK[1], Z[1]), 4, 27)
        for pr in range(2):
            gg = G(3 + pr)
            acc = ACC[(2 + pr) % 2]
            for i in range(8):
                gg[4 + i // 4]['valu'].append(f'v_cvt_pk_bf16_f32 {v(VP+i)}, {v(acc+2*i)}, {v(acc+2*i+1)}')
            gg[7]['pre'].append(f'{MF} {v(KV,16)}, {v(PK[pr],4)}, {v(VP,4)}, 0')
            gg[7]['pre'].append(f'{MF} {v(KV,16)}, {v(PK[pr]+4,4)}, {v(VP+4,4)}, {v(KV,16)}')
            for i in range(8):
                gg[11 + i // 4]['valu'].append(f'v_cndmask_b32 {v(CS+i)}, {v(KV+8+i)}, {v(KV+i)}, s[{sSEL}:{sSEL+1}]')
        def wr(pr, h):
            def f(p):
                R['lw'] = p(f'ds_write_b128 {v(vSW)}, {v(CS+4*h,4)} offset:{SCR + (2*pr+h)*1024}')
            return f
        G(3)[16]['mem'].append(wr(0, 0)); G(3)[20]['mem'].append(wr(0, 1))
        G(3)[8]['valu'] += [f'v_permlane32_swap_b32 {v(Z[0])}, {v(Z[1])}', f'v_add_f32 {v(Z[0])}, {v(Z[0])}, {v(Z[1])}',
                            f'v_lshlrev_b32 {v(t0)}, 2, {v(vLANE)}', f'v_add_u32 {v(t1)}, s{sLDS}, {v(t0)}']
        G(3)[12]['mem'].append(f'ds_write_b32 {v(t1)}, {v(Z[0])} offset:{SCR + 4096}')
        G(4)[12]['mem'].append(wr(1, 0)); G(4)[16]['mem'].append(wr(1, 1))

        def bar_red(p):
            p.wait(lg=R['lw'])
            p('s_barrier')
        G(4)[20]['pre'].append(bar_red)
        RD = KV
        base2 = vTMP + 3
        G(4)[14]['valu'] += [f'v_add_u32 {v(base2)}, {2*REGION}, {v(vSR)}', f'v_add_u32 {v(t1)}, {2*REGION}, {v(t0)}']
        def rd(ww):
            def f(p):
                R['lr'] = p(f'ds_read_b128 {v(RD+4*ww,4)}, {v(vSR if ww < 2 else base2)} offset:{SCR + (ww%2)*REGION}')
            return f
        def rz(ww):
            def f(p):
                R['lr'] = p(f'ds_read_b32 {v(CS+ww)}, {v(t0 if ww < 2 else t1)} offset:{SCR + 4096 + (ww%2)*REGION}')
            return f
        def drain(p):
            p.wait(lg=p.nlg - 5)
        G(4)[20]['mem'] += [rd(0), rd(1), rd(2), rd(3)]
        G(4)[21]['pre'] += [drain]
        G(4)[21]['mem'] += [rz(0), rz(1), rz(2), rz(3)]
        G(4)[22]['pre'] += [drain]
        G(4)[23]['valu'] += [lambda p: p.wait(lg=R['lr'])]
        for i in range(4):
            G(4)[24]['valu'] += [f'v_add_f32 {v(RD+i)}, {v(RD+i)}, {v(RD+4+i)}']
            G(4)[25]['valu'] += [f'v_add_f32 {v(RD+8+i)}, {v(RD+8+i)}, {v(RD+12+i)}']
            G(4)[26]['valu'] += [f'v_add_f32 {v(RD+i)}, {v(RD+i)}, {v(RD+8+i)}']
        G(4)[24]['valu'] += [f'v_add_f32 {v(CS)}, {v(CS)}, {v(CS+1)}']
        G(4)[25]['valu'] += [f'v_add_f32 {v(CS+2)}, {v(CS+2)}, {v(CS+3)}']
        G(4)[26]['valu'] += [f'v_add_f32 {v(CS)}, {v(CS)}, {v(CS+2)}']

        def pub(p):
            p(f's_lshl_b32 s{sT2}, s{sKVF}, 3')
            p(f's_add_u32 s{sT2}, s{sT2}, {WS_C}')
            p(f'buffer_store_dwordx4 {v(RD,4)}, {v(vL16)}, {srd(SRD_WS)}, s{sT2} offen sc1')
            p(f's_add_u32 s{sT2}, s{sKVF}, {WS_Z}')
            R['kvst'] = p(f'buffer_store_dword {v(CS)}, {v(vZO)}, {srd(SRD_WS)}, s{sT2} offen sc1')
        G(4)[27]['mem'].append(pub)
        G(5)[20]['mem'].append(lambda p: self.flag_store(p, R['kvst'], WS_FKV, sKVF))
        self.spread(G(5), self.phi_ops(4, PK[0]), 4, 27)
        self.barrier_at(gl[24], lambda: R['k1'])
        gl[26]['valu'].append(self.get_tag_check)
        self.barrier_at(gl[28], lambda: R['v'])
        qd = []
        for s in range(8):
            qd.append(self.wdma(4, s, False)); qd.append(self.wdma(0, s, True))
        self.place_dmas(gl, 28, qd, per=2, rec=R, key='q')
        for g in range(2, 6):
            self.barrier_at(gl[32 * g + 28], (lambda: R['q']) if g == 2 else (lambda: None))
            self.place_dmas(gl, 32 * g + 28, self.w2piece(g - 2), per=(2 if g == 5 else 1), rec=R, key=('w2', g - 2))
        for g in range(6):
            self.group(p, g, g >= 4, g == 5, G(g))
            if g == 0: self.stamp(p, 5, 'g0 done')
            if g == 3: self.stamp(p, 6, 'g3 done')
        self.stamp(p, 7, 'p1 mfma done')
        p(f's_mov_b32 s{sT3}, {WS_FKV}')
        tok = self.poll_issue(p, SRD_WS, vKP, f's{sT3}')
        vKW, vZW, vA0, vA1, vZG = VP, VP + 1, VP + 2, VP + 3, VP + 4
        p(f'''s_lshr_b32 s{sT0}, s{sW}, 1
              s_lshl_b32 s{sT0}, s{sT0}, 10
              s_and_b32 s{sT1}, s{sW}, 1
              s_lshl_b32 s{sT1}, s{sT1}, 3
              s_add_u32 s{sT0}, s{sT0}, s{sT1}
              v_add_u32 {v(vKW)}, s{sT0}, {v(vL16)}
              v_bfe_u32 {v(t0)}, {v(vLANE)}, 2, 1
              v_lshlrev_b32 {v(t0)}, 4, {v(t0)}
              v_bfe_u32 {v(t1)}, {v(vLANE)}, 3, 1
              v_lshl_add_u32 {v(t0)}, {v(t1)}, 3, {v(t0)}
              v_and_b32 {v(t1)}, 3, {v(vLANE)}
              v_lshl_add_u32 {v(t0)}, {v(t1)}, 1, {v(t0)}
              s_lshr_b32 s{sT0}, s{sW}, 1
              s_lshl_b32 s{sT0}, s{sT0}, 10
              s_and_b32 s{sT1}, s{sW}, 1
              s_lshl_b32 s{sT1}, s{sT1}, 5
              s_add_u32 s{sT0}, s{sT0}, s{sT1}
              v_add_u32 {v(vZW)}, s{sT0}, {v(t0)}
              v_lshrrev_b32 {v(t0)}, 5, {v(vLANE)}
              v_lshlrev_b32 {v(t0)}, 4, {v(t0)}
              v_add_u32 {v(t0)}, 2048, {v(t0)}
              v_add_u32 {v(t1)}, 32, {v(t0)}
              v_cndmask_b32 {v(vA0)}, {v(t0)}, {v(vL16)}, s[{sSEL}:{sSEL+1}]
              v_cndmask_b32 {v(vA1)}, {v(vL16)}, {v(t1)}, s[{sSEL}:{sSEL+1}]
              v_lshrrev_b32 {v(t0)}, 4, {v(vLANE)}
              v_lshlrev_b32 {v(t0)}, 7, {v(t0)}
              v_and_b32 {v(t1)}, 15, {v(vLANE)}
              v_lshl_add_u32 {v(vZG)}, {v(t1)}, 2, {v(t0)}''')
        for o in self.phi_ops(5, PK[1]):
            p(o[0])
        self.poll_check(p, tok, SRD_WS, vKP, f's{sT3}')
        self.stamp(p, 8, 'kv flags ok')
        GB = XF + 64
        p(f'''s_lshl_b32 s{sT0}, s{sKVB}, 10
              s_add_u32 s{sT0}, s{sT0}, {WS_C}
              s_lshl_b32 s{sT1}, s{sKVB}, 7
              s_add_u32 s{sT1}, s{sT1}, {WS_Z}''')
        gt = []
        for i in range(4):
            zt = p(f'buffer_load_dword {v(CS+i)}, {v(vZG)}, {srd(SRD_WS)}, s{sT1} offen offset:{i*512} sc1')
        for i in range(16):
            gt.append(p(f'buffer_load_dwordx4 {v(GB+4*i,4)}, {v(vL16)}, {srd(SRD_WS)}, s{sT0} offen offset:{(i%4)*1024} sc1'))
            if i % 4 == 3 and i < 15:
                p(f's_add_u32 s{sT0}, s{sT0}, 4096')
        p(f's_mov_b32 s{sT3}, {WS_FH}')
        R['pa'] = self.poll_issue(p, SRD_WS, vPOLL, f's{sT3}')
        p.wait(vm=zt)
        p(f'''v_add_f32 {v(CS)}, {v(CS)}, {v(CS+1)}
              v_add_f32 {v(CS+2)}, {v(CS+2)}, {v(CS+3)}
              v_add_f32 {v(CS)}, {v(CS)}, {v(CS+2)}
              v_mov_b32 {v(CS+1)}, {v(CS)}
              s_nop 1
              v_permlane32_swap_b32 {v(CS)}, {v(CS+1)}
              v_add_f32 {v(CS)}, {v(CS)}, {v(CS+1)}
              v_mov_b32 {v(CS+1)}, {v(CS)}
              s_nop 1
              v_permlane16_swap_b32 {v(CS)}, {v(CS+1)}
              v_add_f32 {v(CS)}, {v(CS)}, {v(CS+1)}
              v_cvt_pk_bf16_f32 {v(CS)}, {v(CS)}, {v(CS)}
              ds_write_b16 {v(vZW)}, {v(CS)} offset:{SCR + 2048}''')
        for i in range(1, 16):
            p.wait(vm=gt[i])
            p(f'v_pk_add_f32 {v(GB,2)}, {v(GB,2)}, {v(GB+4*i,2)}')
            p(f'v_pk_add_f32 {v(GB+2,2)}, {v(GB+2,2)}, {v(GB+4*i+2,2)}')
        p(f'''v_cvt_pk_bf16_f32 {v(GB)}, {v(GB)}, {v(GB+1)}
              v_cvt_pk_bf16_f32 {v(GB+1)}, {v(GB+2)}, {v(GB+3)}
              ds_write_b64 {v(vKW)}, {v(GB,2)} offset:{SCR}
              s_waitcnt lgkmcnt(0)
              s_barrier''')
        for hd in range(4):
            p(f'ds_read_b128 {v(KV+4*hd,4)}, {v(vA1 if hd%2 else vA0)} offset:{SCR + (hd//2)*1024}')
        self.poll_check(p, R['pa'], SRD_WS, vPOLL, f's{sT3}')
        p('s_waitcnt lgkmcnt(0)')
        p('s_barrier')
        for hd in range(4):
            p(f'{MF} {v(GB+16*hd,16)}, {v(KV+4*hd,4)}, {v(PK[hd//2]+4*(hd%2),4)}, 0')
        htok = {}
        for pre, mem in self.w2piece(4):
            for x in pre: p(x)
            R[('w2', 4)] = p(mem)
        for pc in range(min(2, c.hdepth)):
            for pre, mem, st in self.hloads(pc):
                for x in pre: p(x)
                htok[st] = p(mem)
        for hd in range(4):
            D = GB + 16 * hd
            num, den = (D, D + 8) if hd % 2 == 0 else (D + 8, D)
            p(f'v_add_f32 {v(den)}, {f32(1e-6)}, {v(den)}')
            p(f'v_rcp_f32 {v(den)}, {v(den)}')
            p('s_nop 0')
            for i in range(8):
                p(f'v_mul_f32_e64 {v(num+i)}, -{v(den)}, {v(num+i)}')
            for i in range(4):
                p(f'v_cvt_pk_bf16_f32 {v(KV+4*hd+i)}, {v(num+2*i)}, {v(num+2*i+1)}')
            R['ost'] = p(f'buffer_store_dwordx4 {v(KV+4*hd,4)}, {v(vL16)}, {srd(SRD_WS)}, s{sHST} offen offset:{hd*1024} sc1')
        for pc in range(2, c.hdepth):
            for pre, mem, st in self.hloads(pc):
                for x in pre: p(x)
                htok[st] = p(mem)
        hooks = {3: lambda p: self.flag_store(p, R['ost'], WS_FO)}
        self.phase2(p, R, htok, hooks)

    def phase2(self, p, R, htok, hooks):
        c = self.c
        D = c.hdepth
        self.stamp(p, 9, 'p2 start')
        rt = {}

        def wread(p, u, i):
            pc = u // 4
            nh, hf = i // 2, i % 2
            if u % 4 == 0 and i == 0:
                p.wait(vm=R[('w2', pc)])
            q = aB + 8 * (u % 4) + 4 * nh + 2 * hf
            off = ((pc + 2) % 5) * 8192 + (u % 4) * 2048 + hf * 1024
            rt[u] = p(f'ds_read_b64_tr_b16 {a(q,2)}, {v(vP2+nh)} offset:{off}')
        for u in range(2):
            for i in range(4):
                wread(p, u, i)
        gl = self.newgaps(36 * 4 + 8)
        need = {4: WS_FH + 0x10000, 5: WS_FH + 0x20000, 7: WS_FO}
        for pc in range(D, 9):
            g0 = 16 * (pc - D)
            if pc in need:
                def iss(p, pc=pc):
                    p(f's_mov_b32 s{sT3}, {need[pc]}')
                    R[('poll', pc)] = self.poll_issue(p, SRD_WS, vPOLL, f's{sT3}')
                gl[max(g0 - 14, 0)]['mem'].append(iss)
                gl[g0]['pre'].append(lambda p, pc=pc: self.poll_check(p, R[('poll', pc)], SRD_WS, vPOLL, f's{sT3}'))
            for n, (pre, mem, st) in enumerate(self.hloads(pc)):
                def f(p, mem=mem, st=st):
                    htok[st] = p(mem)
                gl[g0 + n]['pre'] += pre
                gl[g0 + n]['mem'].append(f)
        for pc in range(5, 9):
            self.place_dmas(gl, 16 * (pc - 5) + 12, self.w2piece(pc), per=2 , rec=R, key=('w2', pc))
        vRO, XR = vB, vT
        def resid(p):
            p(f'''v_lshrrev_b32 {v(vTMP)}, 3, {v(vLANE)}
                  v_and_b32 {v(vTMP+1)}, 7, {v(vLANE)}
                  v_lshlrev_b32 {v(vTMP+1)}, 4, {v(vTMP+1)}
                  v_lshl_add_u32 {v(vRO)}, {v(vTMP)}, 10, {v(vTMP+1)}
                  v_add_u32 {v(vRO+1)}, 8192, {v(vRO)}
                  s_lshl_b32 s{sHST}, s{sRB2}, 2
                  s_add_u32 s{sHST}, s{sHST}, s{sW}
                  s_lshl_b32 s{sHST}, s{sHST}, 14
                  s_lshl_b32 s{sHST1}, s{sCB}, 7
                  s_add_u32 s{sHST}, s{sHST}, s{sHST1}''')
        gl[16 * 6 + 9]['valu'].append(resid)
        def resid_ld(p):
            p(f'buffer_load_dwordx4 {v(XR,4)}, {v(vRO)}, {srd(SRD_X)}, s{sHST} offen')
            R['res'] = p(f'buffer_load_dwordx4 {v(XR+4,4)}, {v(vRO+1)}, {srd(SRD_X)}, s{sHST} offen')
        gl[16 * 6 + 11]['mem'].append(resid_ld)
        PS = 272
        vRW, vRR = vB + 2, vB + 3
        def redaddr(p):
            p(f'''v_and_b32 {v(vTMP)}, 31, {v(vLANE)}
                  v_mul_u32_u24 {v(vTMP)}, {PS}, {v(vTMP)}
                  v_lshrrev_b32 {v(vTMP+1)}, 5, {v(vLANE)}
                  v_lshl_add_u32 {v(vTMP)}, {v(vTMP+1)}, 4, {v(vTMP)}
                  v_add_u32 {v(vRW)}, s{sLDS}, {v(vTMP)}
                  v_lshrrev_b32 {v(vTMP)}, 3, {v(vLANE)}
                  v_mul_u32_u24 {v(vTMP)}, {PS}, {v(vTMP)}
                  v_and_b32 {v(vTMP+1)}, 7, {v(vLANE)}
                  v_lshl_add_u32 {v(vTMP)}, {v(vTMP+1)}, 5, {v(vTMP)}
                  s_mul_i32 s{sT2}, s{sW}, {16*PS}
                  v_add_u32 {v(vRR)}, s{sT2}, {v(vTMP)}
                  v_add_u32 {v(vWL)}, {2*REGION}, {v(vRR)}''')
        gl[16 * 7 + 9]['valu'].append(redaddr)

        def run(items):
            for it in items:
                if callable(it): it(p)
                else: p(it)
        for u in range(36):
            if u in hooks:
                hooks[u](p)
            p.wait(vm=htok[u], lg=rt[u])
            if u == 0: self.stamp(p, 10, 'p2 first data')
            for i in range(4):
                gp = gl[4 * u + i]
                nh, mh = i // 2, i % 2
                run(gp['pre'])
                ac = aACC + 16 * i
                hr = XF + ((u // 4) % 4) * 32 + (u % 4) * 8 + mh * 4
                p(f'{MF} {a(ac,16)}, {a(aB + 8*(u%4) + 4*nh, 4)}, {v(hr,4)}, {a(ac,16) if u else 0}')
                run(gp['mem'])
                if u + 2 < 36:
                    wread(p, u + 2, i)
                run(gp['valu'])
            if u == 19: self.stamp(p, 11, 'p2 piece4 done')
            if u == 27: self.stamp(p, 12, 'p2 ffn done')
        self.stamp(p, 13, 'p2 mfma done')
        p('s_nop 8')
        for i in range(4):
            nh, mh = i // 2, i % 2
            for k in range(4):
                if p.nlg - p.lg_done >= 15:
                    p.wait(lg=p.nlg - 8)
                p(f'ds_write_b128 {v(vRW)}, {a(aACC+16*i+4*k,4)} offset:{mh*32*PS + (nh*32+8*k)*4}')
        p('s_waitcnt lgkmcnt(0)')
        p('s_barrier')
        Q = XF
        tk = {}
        for j in range(2):
            for ww in range(4):
                for h in range(2):
                    if p.nlg - p.lg_done >= 15:
                        p.wait(lg=p.nlg - 8)
                    tk[j] = p(f'ds_read_b128 {v(Q+32*j+8*ww+4*h,4)}, {v(vRR if ww < 2 else vWL)} offset:{(ww%2)*REGION + j*8*PS + h*16}')
        p(f's_mov_b32 s{sT0}, {f32(-LN2)}')
        p.wait(vm=R['res'])
        U = vT + 8
        for j in range(2):
            for i in range(4):
                p(f'v_lshlrev_b32 {v(U+8*j+2*i)}, 16, {v(XR+4*j+i)}')
                p(f'v_and_b32 {v(U+8*j+2*i+1)}, s{sMASK}, {v(XR+4*j+i)}')
        for j in range(2):
            p.wait(lg=tk[j])
            q = Q + 32 * j
            for i in range(4):
                p(f'v_pk_add_f32 {v(q+2*i,2)}, {v(q+2*i,2)}, {v(q+8+2*i,2)}')
            for i in range(4):
                p(f'v_pk_add_f32 {v(q+16+2*i,2)}, {v(q+16+2*i,2)}, {v(q+24+2*i,2)}')
            for i in range(4):
                p(f'v_pk_add_f32 {v(q+2*i,2)}, {v(q+2*i,2)}, {v(q+16+2*i,2)}')
            for i in range(8):
                p(f'v_fmac_f32 {v(U+8*j+i)}, s{sT0}, {v(q+i)}')
            for i in range(4):
                p(f'v_cvt_pk_bf16_f32 {v(XR+4*j+i)}, {v(U+8*j+2*i)}, {v(U+8*j+2*i+1)}')
            p(f'buffer_store_dwordx4 {v(XR+4*j,4)}, {v(vRO+j)}, {srd(SRD_OUT)}, s{sHST} offen')
        if c.stamps:
            p('s_waitcnt vmcnt(0)')
            p.ins.append(self.raw('s_memtime s[0:1]'))
            p.ins.append(self.raw('s_memrealtime s[100:101]'))
            p('s_waitcnt lgkmcnt(0)')
            p(f'''s_lshl_b32 s{sT0}, s2, 2
                  s_add_u32 s{sT0}, s{sT0}, s{sW}
                  s_lshl_b32 s{sT0}, s{sT0}, 7
                  s_add_u32 s{sT0}, s{sT0}, {WS_STAMP}''')
            regs = [98, 100, 96] + [sSTAMP + 2 * i for i in range(9)] + [86 + 2 * i for i in range(5)] + [0]
            for n, r in enumerate(regs):
                p(f'v_mov_b32 {v(vTMP)}, s{r}')
                p(f'buffer_store_dword {v(vTMP)}, {v(vFLG)}, {srd(SRD_WS)}, s{sT0} offen offset:{4*n}')
        p('s_endpgm')

    def build(self):
        head = Prog()
        self.prologue(head)
        g0 = self.g0tok
        pf = head.fork()
        self.ffn(pf)
        tail_f, self.tail = self.tail, []
        pa = head.fork()
        pa('L_attn:')
        self.g0tok = g0
        self.attn(pa)
        errs = pf.check('ffn') + pa.check('attn')
        for e in dict.fromkeys(errs):
            print('CHECK', e, file=sys.stderr)
        ref = open(f'cdna_kernels/{NAME}.s.ref').read().split('\n')
        hdr = [l for l in ref if l.startswith(';') and '@launch' not in l and 'Override' not in l and 'grid=ceil' not in l]
        out = hdr + ['; @launch grid=(256,1,1) block=(256,1,1) lds=163840',
                     '.amdgcn_target "amdgcn-amd-amdhsa--gfx950"', '.text', f'.globl {NAME}_kernel', '.p2align 8',
                     f'.type {NAME}_kernel,@function', f'{NAME}_kernel:',
                     head.text(), pf.text(), '\n'.join(tail_f), pa.text(), '\n'.join(self.tail),
                     '.section .rodata,"a"', '.p2align 6', f'.amdhsa_kernel {NAME}_kernel',
                     '  .amdhsa_next_free_vgpr 512', '  .amdhsa_next_free_sgpr 102', '  .amdhsa_accum_offset 256',
                     '  .amdhsa_group_segment_fixed_size 0', '  .amdhsa_kernarg_size 72', '  .amdhsa_user_sgpr_count 2',
                     '  .amdhsa_user_sgpr_kernarg_segment_ptr 1', '  .amdhsa_system_sgpr_workgroup_id_x 1',
                     '.end_amdhsa_kernel', '']
        return '\n'.join(out), len(errs)


if __name__ == '__main__':
    kw = {}
    outp = f'cdna_kernels/{NAME}.s'
    for arg in sys.argv[1:]:
        k, _, val = arg.partition('=')
        if k == 'out':
            outp = val
        else:
            kw[k] = int(val)
    g = Gen(Cfg(**kw))
    txt, nerr = g.build()
    open(outp, 'w').write(txt)
    print('wrote', outp, len(txt), 'bytes; check errors:', nerr)
```

```python
import sys, struct, os
sys.path.insert(0, os.path.dirname(os.path.abspath(__file__)))
from asmkit import Prog, Ins

NAME = 'parallel_sum__linear_attn_block__dense_activation_silu__prompt'
f32 = lambda x: '0x%08x' % struct.unpack('<I', struct.pack('<f', x))[0]
LOG2E, LN2 = 1.4426950408889634, 0.6931471805599453

WS_FH = 0x10000
WS_FO = 0x90000
WS_FA = 0x80000
WS_C = 0xA00000
WS_H = 0x100000
RG = 144 * 1024
WS_STAMP = 0xB00000
WS_X = 0xC00000
WS_SIZE = 0x1000000
OOB = 0x40000000
REGION = 40960
SPIN_MAX = 400000

sW = 3
SRD_X, SRD_W, SRD_W2, SRD_WO, SRD_WS, SRD_OUT = 4, 8, 12, 16, 20, 24
sHB = 28
sRB, sJ, sROLE, sKH, sCB, sLDS, sTAG, sSTRIDE = 32, 33, 34, 35, 36, 37, 38, 39
sTAB = 40
sT0, sT1, sT2, sT3 = 48, 49, 50, 51
sONES, sMASK, sLN2, sPHC = 52, 53, 54, 55
sHST, sHST1, sFLAG, sW20, sW21, sWOB, sSPIN, sXO = 56, 57, 58, 59, 60, 61, 62, 63
sUD = sPHC
sW22, sW23 = sONES, sXO
sKA = 64
sSEL = 82
SRD_T = 84
sKVB, sKVF = sSTRIDE, sHST1
sSTAMP = 64
srd = lambda b: f's[{b}:{b+3}]'

vLANE, vL16, vPOLH, vWL, vWR = 1, 2, 3, 4, 5
vB = 6
vX = 10
vXR = 14
vZERO, vRO = 18, 19
vW2B = 0
vFLG, vP2B, vTAGV, vTCH = 20, 21, 22, 23
vAB = 24
vTMP = 26
vPOL1 = vTMP
vPV = 30
ACC = (32, 48)
vRESV = 64 + 24
vT = 64
XF = 128
vP2 = XF
vRES = XF + 8
GB = XF + 16
vU = XF + 80
ACC2 = (XF + 112, XF + 96)
aB = 0
aRES = 248
NRING = 27
aH = 32

v = lambda b, n=1: f'v{b}' if n == 1 else f'v[{b}:{b+n-1}]'
a = lambda b, n=1: f'a{b}' if n == 1 else f'a[{b}:{b+n-1}]'
MF = 'v_mfma_f32_32x32x16_bf16'
lines = lambda txt, cost=4: [(l.strip(), cost) for l in txt.split('\n') if l.strip()]


class Cfg:
    stamps = None
    rt = 0
    diag = None
    cad = 3
    cad6 = 2
    cadr = 2
    wlate = 4
    c3ch = 2
    c3 = 2
    ctouch = 1
    xla = 3
    xrot = 1
    nins = 1
    ua7 = 4
    ua5 = 4
    uas = 0
    wearly = 1
    nu2 = 0
    urot = 0
    nub = 6
    opc = 78
    clrs = 10
    b92 = 92
    p2f = 210
    p2a = 160
    verbose = 0
    xnt = 0
    sto = 25
    tlb = 0
    wsoff = 0
    clr0 = 0
    sent = (4, 5, 6, 7, 8)
    fset = (0, 1, 2, 3, 4, 5, 6)
    stc = 25
    flc = 750
    visc = 900
    plc = 750
    gt2 = 36
    dxcd = -1
    pages = 2
    spins = 0
    vis = 20
    orel = 290
    clr = 3
    ltg = 40
    lag = 22
    pl = 22
    fl = 19
    e5 = 22
    outsc1 = 1
    outl = 1
    defer = 0
    rxl = 20
    rxw = 0
    gstart = 170
    gspan = 28
    nin = 12
    gta = 90
    gts = 400
    gto = 76
    own = 3
    w64 = 1
    f00 = 76
    pla = 7
    arel = (158, 0, 203, 213, 226, 244, 258, 258, 258)
    ospan = 9
    sec = 16

    def __init__(self, **kw):
        self.__dict__.update(kw)


class Gen:
    def __init__(self, cfg):
        self.c = cfg
        self.tail = []
        self.nlab = 0
        self.gslot = (0, 1)
        self.clk = 's_memrealtime' if cfg.rt else 's_memtime'

    def stamp(self, p, name):
        if self.c.diag == name:
            p.ins.append(self.raw('s_memrealtime s[96:97]'))
        if self.c.stamps and name in self.c.stamps:
            idx = self.c.stamps.index(name)
            r = (88 + 2 * idx) if idx < 4 else (sSTAMP + 2 * (idx - 4))
            assert idx < 13
            p.ins.append(self.raw(f'{self.clk} s[{r}:{r+1}]'))

    def raw(self, text):
        i = Ins('')
        i.text = '    ' + text
        return i

    def poll_issue(self, p, voff, step, pv):
        p(f's_mov_b32 s{sT3}, {step << 16}')
        return (p(f'buffer_load_dword {v(pv)}, {v(voff)}, {srd(SRD_WS)}, s{sT3} offen sc1'), voff, step, pv)

    def poll_check(self, p, h, part=0):
        tok, voff, step, pv = h
        cmp = f'v_cmp_ne_u32 vcc, s{sTAG}, {v(pv)}'
        if part != 2:
            p.wait(vm=tok)
            p(cmp)
        if part != 1:
            self.retry(p, cmp, [f's_mov_b32 s{sT3}, {step << 16}'], f'buffer_load_dword {v(pv)}, {v(voff)}, {srd(SRD_WS)}, s{sT3} offen sc1',
                       done=True, name=f'F{step - 1}')

    def retry(self, p, cmp, pre, load, done=False, name='?'):
        n = self.nlab; self.nlab += 1
        if self.c.spins:
            pre = pre + [f's_bitset1_b32 s80, {len(self.spn)}']
            self.spn.append(name)
        if not done:
            p(cmp)
        p(f's_cbranch_vccnz L_spin{n}')
        p(f'L_ok{n}:')
        self.tail += [f'L_spin{n}:', f'    s_mov_b32 s{sSPIN}, 0'] + ['    ' + x for x in pre] + [
                      f'L_spinl{n}:', '    ' + load,
                      f'    s_add_u32 s{sSPIN}, s{sSPIN}, 1',
                      f'    s_cmp_gt_u32 s{sSPIN}, {SPIN_MAX}',
                      '    s_waitcnt vmcnt(0)',
                      f'    s_cbranch_scc1 L_ok{n}',
                      '    ' + cmp,
                      f'    s_cbranch_vccnz L_spinl{n}', f'    s_branch L_ok{n}']

    def wdma(self, slot, s, right):
        return ([f's_add_u32 m0, s{sLDS}, {slot*8192 + s*1024}'],
                f'buffer_load_dwordx4 {v(vWR if right else vWL)}, {srd(SRD_W)}, s{sTAB+s} offen lds')

    def unit(self, sl, sr):
        out = []
        for s in range(8):
            out += [self.wdma(sl, s, False), self.wdma(sr, s, True)]
        return out

    def w2off(self, s):
        return self.w2map[s] * 4096

    def w2stage(self, s, areg=None):
        base, add, s_ = (sW20, 0, SRD_W2) if s == 4 else ((sW21, sW22, sW23)[(s - (s > 4)) >> 1], ((s - (s > 4)) & 1) * 32768, SRD_W2) if s < 7 else (sWOB, (s - 7) * 32768, SRD_WO)
        out = []
        for i in range(4):
            pre = []
            if i == 0:
                if areg is None:
                    pre.append(f's_add_u32 m0, s{sLDS}, {self.w2off(s)}')
                pre.append(f's_add_u32 s{sT0}, s{base}, {add}')
            if areg is None:
                mem = f'buffer_load_dwordx4 {v(vX+i)}, {srd(s_)}, s{sT0} offen offset:{i*1024} lds'
            else:
                mem = f'buffer_load_dwordx4 {a(areg+4*i,4)}, {v(vX+i)}, {srd(s_)}, s{sT0} offen offset:{i*1024}'
            out.append((pre, mem))
        return out

    @staticmethod
    def haddr(s, i, e):
        k = s >> 1
        return f'{v(vL16 if k == 0 else vXR + k - 1)}, {srd(SRD_WS)}, s{sHB+i} offen offset:{(s & 1)*2048 + e*1024} sc1'

    def hblock(self, s, i, areg):
        return [([], f'buffer_load_dwordx4 {a(areg+4*e,4)}, {self.haddr(s, i, e)}') for e in range(2)]

    def emit_op(self, p, op, R=None, key=None):
        pre, mem = op
        for x in pre:
            if callable(x): x(p)
            else: p(x)
        if pre and isinstance(pre[-1], str) and 'm0' in pre[-1]:
            p('s_nop 0')
        tok = p(mem)
        if R is not None:
            R[key] = tok
        return tok

    def touch(self, p, lo, hi):
        if (lo, hi) == (0, 3):
            p(f'buffer_load_dword {v(vTCH)}, {v(vTCH)}, {srd(SRD_T)}, 0 offen')
            return
        d = vTCH if lo else vPV + 1
        p(f's_cmp_{"gt" if lo == 0 else "lt"}_u32 s{sW}, {hi if lo == 0 else lo}')
        p(f's_cselect_b32 s{sSPIN}, {OOB}, 0')
        p(f'v_or_b32 {v(d)}, s{sSPIN}, {v(vTCH)}')
        p(f'buffer_load_dword {v(d)}, {v(d)}, {srd(SRD_T)}, 0 offen')

    def prologue(self, p):
        c = self.c
        p(f'''s_cmp_lt_u32 s2, 256
              s_cbranch_scc1 L_go
              s_endpgm
              L_go:
              s_load_dwordx16 s[{sKA}:{sKA+15}], s[0:1], 0
              s_load_dwordx2 s[{sKA+16}:{sKA+17}], s[0:1], 64''')
        if c.stamps:
            p.ins.append(self.raw('s_memrealtime s[98:99]'))
            p.ins.append(self.raw(f'{self.clk} s[96:97]'))
        if c.diag:
            p.ins.append(self.raw('s_memrealtime s[98:99]'))
            self.stamp(p, 'start')
        t0, t1, t2, t3 = vTMP, vTMP + 1, vTMP + 2, vTMP + 3
        sSLOT, sRQ, sT8x = sTAB, sTAB + 1, sLN2
        p(f'''v_lshrrev_b32 {v(t0)}, 6, v0
              v_and_b32 {v(vLANE)}, 63, v0
              v_readfirstlane_b32 s{sW}, {v(t0)}
              s_lshr_b32 s{sSLOT}, s2, 3''')
        if c.ctouch:
            p(f'''s_cmp_lg_u32 s{sW}, 3
                  s_cbranch_scc1 L_nct
                  s_getpc_b64 s[{sT0}:{sT0+1}]
                  L_pc:
                  s_mul_i32 s{sT2}, s{sSLOT}, {14*128}
                  v_lshl_add_u32 {v(t0)}, {v(vLANE)}, 7, s{sT2}
                  v_min_u32 {v(t0)}, L_codeend-L_pc-4, {v(t0)}
                  v_mov_b32 {v(t1)}, s{sT0+1}
                  v_add_co_u32 {v(t0)}, vcc, s{sT0}, {v(t0)}
                  s_mov_b64 exec, 0x3fff
                  s_nop 0
                  v_addc_co_u32 {v(t1)}, vcc, 0, {v(t1)}, vcc''')
            p.ins.append(self.raw(f'global_load_dword {v(vPV+1)}, {v(t0,2)}, off'))
            p('''s_mov_b64 exec, -1
                 L_nct:''')
        p(f'''s_and_b32 s{sKH}, s2, 1
              s_bfe_u32 s{sRQ}, s2, 0x20001
              s_and_b32 s{sT0}, s{sSLOT}, 3
              s_lshl2_add_u32 s{sRB}, s{sRQ}, s{sT0}
              s_lshr_b32 s{sT8x}, s{sSLOT}, 2
              s_lshr_b32 s{sROLE}, s{sT8x}, 2
              s_and_b32 s{sT0}, s{sT8x}, 3
              s_lshl2_add_u32 s{sJ}, s{sKH}, s{sT0}
              s_xor_b32 s{sCB}, s{sT8x}, 1               ; output column block
              s_mul_i32 s{sLDS}, s{sW}, {REGION}
              s_lshl2_add_u32 s{sT0}, s{sRB}, s{sW}
              s_lshl_b32 s{sXO}, s{sT0}, 15
              s_mul_i32 s{sHST}, s{sT0}, {RG}
              s_add_u32 s{sHST}, s{sHST}, {WS_H}
              s_lshl_b32 s{sSTRIDE}, s{sROLE}, 9
              s_add_u32 s{sSTRIDE}, s{sSTRIDE}, 3072''')
        if c.xrot:
            p(f'''s_lshl_b32 s{sT0}, s{sT8x}, 7
                  s_add_u32 s{sXO}, s{sXO}, s{sT0}''')
        p(f'''v_lshrrev_b32 {v(t0)}, 3, {v(vLANE)}      ; rr
              v_and_b32 {v(t1)}, 7, {v(vLANE)}          ; pos
              v_lshrrev_b32 {v(t3)}, 4, {v(vLANE)}      ; rr>>1
              v_xor_b32 {v(t2)}, {v(t1)}, {v(t3)}
              v_lshlrev_b32 {v(t2)}, 4, {v(t2)}
              v_lshl_add_u32 {v(vX)}, {v(t0)}, 10, {v(t2)}
              v_xor_b32 {v(t2)}, 64, {v(vX)}
              v_add_u32 {v(vX+1)}, 7168, {v(t2)}
              v_add_u32 {v(vX+2)}, {2*7168}, {v(vX)}
              v_add_u32 {v(vX+3)}, {3*7168}, {v(t2)}''')
        p(f'''s_mov_b32 s{SRD_X+2}, 0x200000
              s_mov_b32 s{SRD_X+3}, 0x20000
              s_waitcnt lgkmcnt(0)''')
        self.stamp(p, 'ka')
        p(f'''s_mov_b32 s{SRD_X}, s{sKA}
              s_and_b32 s{SRD_X+1}, s{sKA+1}, 0xffff''')
        self.xtok, self.rtok = {}, {}
        self.xdma(p, 0)
        sS, sP, sC, sLn, sBs = sTAB + 4, sTAB + 5, sTAB + 6, sTAB + 7, sT3
        p(f'''s_lshl_b32 s{sT0}, s{sRQ}, 5
              s_add_u32 s{sT0}, s{sT0}, s{sSLOT}
              s_movk_i32 s{sS}, 2048
              s_movk_i32 s{sP}, 512
              s_movk_i32 s{sC}, 16
              s_movk_i32 s{sLn}, 16
              s_lshl_b32 s{sT1}, s{sKH}, 7
              s_add_u32 s{sT1}, s{sT1}, s{sT0}
              s_lshl_b32 s{sBs}, s{sT1}, 11
              s_mul_i32 s{sT1}, s{sT1}, 7168
              s_cmp_eq_u32 s{sW}, 2
              s_cselect_b32 s{sLn}, 56, s{sLn}
              s_cselect_b32 s{sBs}, s{sT1}, s{sBs}
              s_lshl3_add_u32 s{sT1}, s{sT0}, s{sKH}
              s_mul_i32 s{sT1}, s{sT1}, 1792
              s_cmp_eq_u32 s{sW}, 1
              s_cselect_b32 s{sS}, 3584, s{sS}
              s_cselect_b32 s{sC}, 14, s{sC}
              s_cselect_b32 s{sLn}, 64, s{sLn}
              s_cselect_b32 s{sBs}, s{sT1}, s{sBs}
              s_mul_i32 s{sT1}, s{sT0}, 24
              s_add_u32 s{sT1}, s{sT1}, s{sKH}
              s_lshl_b32 s{sT1}, s{sT1}, 9
              s_cmp_eq_u32 s{sW}, 0
              s_cselect_b32 s{sS}, 3072, s{sS}
              s_cselect_b32 s{sP}, 1024, s{sP}
              s_cselect_b32 s{sC}, 12, s{sC}
              s_cselect_b32 s{sLn}, 64, s{sLn}
              s_cselect_b32 s{sBs}, s{sT1}, s{sBs}
              v_mul_u32_u24 {v(t2)}, s{sS}, {v(t3)}
              v_bfe_u32 {v(t0)}, {v(vLANE)}, 2, 2
              v_mul_u32_u24 {v(t0)}, s{sP}, {v(t0)}
              v_add3_u32 {v(t2)}, {v(t2)}, {v(t0)}, s{sBs}
              v_and_b32 {v(t0)}, 3, {v(vLANE)}
              v_lshl_add_u32 {v(t2)}, {v(t0)}, 7, {v(t2)}
              v_and_b32 {v(t0)}, 15, {v(vLANE)}
              v_cmp_gt_u32 vcc, s{sC}, {v(t0)}
              v_mov_b32 {v(t3)}, {OOB}
              s_nop 0
              v_cndmask_b32 {v(t2)}, {v(t3)}, {v(t2)}, vcc
              v_cmp_gt_u32 vcc, s{sLn}, {v(vLANE)}
              s_nop 0
              s_mov_b32 s{SRD_T+3}, 0x20000
              v_cndmask_b32 {v(vTCH)}, {v(t3)}, {v(t2)}, vcc''')
        p(f'''s_cmp_eq_u32 s{sW}, 2
              s_cselect_b64 s[{SRD_T}:{SRD_T+1}], s[{sKA+10}:{sKA+11}], s[{sKA+4}:{sKA+5}]
              s_cmp_eq_u32 s{sW}, 1
              s_cselect_b64 s[{SRD_T}:{SRD_T+1}], s[{sKA+8}:{sKA+9}], s[{SRD_T}:{SRD_T+1}]
              s_cmp_eq_u32 s{sW}, 0
              s_cselect_b64 s[{SRD_T}:{SRD_T+1}], s[{sKA+2}:{sKA+3}], s[{SRD_T}:{SRD_T+1}]
              s_and_b32 s{SRD_T+1}, s{SRD_T+1}, 0xffff
              s_mov_b32 s{SRD_T+2}, {1792*1024}
              s_cmp_eq_u32 s{sW}, 3
              s_cselect_b32 s{SRD_T+2}, {512*1024}, s{SRD_T+2}
              s_cmp_eq_u32 s{sW}, 0
              s_cselect_b32 s{SRD_T+2}, {1536*1024}, s{SRD_T+2}''')
        if c.wearly == 1:
            self.touch(p, 0, 3 if c.wlate == 1 else 1)
        else:
            self.xdma(p, 1)
        self.stamp(p, 'iss')
        if c.wsoff:
            p(f's_add_u32 s{sKA+16}, s{sKA+16}, {c.wsoff << 20}')
            p(f's_addc_u32 s{sKA+17}, s{sKA+17}, 0')
        if c.clr0:
            CL = vT + 8
            p(f'''s_mov_b32 s{SRD_WS}, s{sKA+16}
                  s_and_b32 s{SRD_WS+1}, s{sKA+17}, 0xffff
                  s_mov_b32 s{SRD_WS+2}, {WS_SIZE}
                  s_mov_b32 s{SRD_WS+3}, 0x20000
                  s_mul_i32 s{sT0}, s{sJ}, {18*1024}
                  s_add_u32 s{sT0}, s{sT0}, s{sHST}
                  s_cmp_eq_u32 s{sROLE}, 0
                  s_cselect_b32 s{sT1}, 14, 10
                  s_cselect_b32 s{sT2}, {OOB}, 0
                  s_lshl_b32 s{sT1}, s{sT1}, 10
                  s_add_u32 s{sT0}, s{sT0}, s{sT1}
                  v_lshlrev_b32 {v(vL16)}, 4, {v(vLANE)}
                  v_mov_b32 {v(CL)}, -1
                  v_mov_b32 {v(CL+1)}, -1
                  v_mov_b32 {v(CL+2)}, -1
                  v_mov_b32 {v(CL+3)}, -1
                  v_or_b32 {v(CL+4)}, s{sT2}, {v(vL16)}''')
            for k in range(c.clr0):
                if k == 4:
                    p(f's_sub_u32 s{sT0}, s{sT0}, 4096')
                self.clrtok = p(f'buffer_store_dwordx4 {v(CL,4)}, {v(vL16 if k < 4 else CL+4)}, {srd(SRD_WS)}, s{sT0} offen offset:{(3 - k % 4)*1024} sc1')
        p(f'''s_load_dword s{sTAG}, s[{sKA+16}:{sKA+17}], 0
              s_cmp_eq_u32 s{sROLE}, 0
              s_cselect_b64 s[{SRD_W}:{SRD_W+1}], s[{sKA+2}:{sKA+3}], s[{sKA+8}:{sKA+9}]
              s_and_b32 s{SRD_W+1}, s{SRD_W+1}, 0xffff
              s_lshl_b32 s{SRD_W+2}, s{sSTRIDE}, 9
              s_mov_b32 s{SRD_W+3}, 0x20000''')
        for d, k, n in ((SRD_W2, 10, 1792 * 1024), (SRD_WO, 4, 512 * 1024), (SRD_WS, 16, WS_SIZE),
                        (SRD_OUT, 12, 0x200000)):
            p(f'''s_mov_b32 s{d}, s{sKA+k}
                  s_and_b32 s{d+1}, s{sKA+k+1}, 0xffff
                  s_mov_b32 s{d+2}, {n}
                  s_mov_b32 s{d+3}, 0x20000''')
        if c.tlb:
            p(f'''v_lshlrev_b32 {v(t0)}, 21, {v(vLANE)}
                  v_add_u32 {v(t0)}, 0x8000, {v(t0)}
                  s_cmp_lg_u32 s{sW}, 3
                  s_cselect_b32 s{sT0}, {OOB}, 0
                  v_or_b32 {v(t0)}, s{sT0}, {v(t0)}
                  buffer_load_dword {v(vT+8)}, {v(t0)}, {srd(SRD_WS)}, 0 offen
                  buffer_load_dword {v(vT+9)}, {v(t0)}, {srd(SRD_OUT)}, 0 offen''')
            if c.tlb > 1:
                p(f'''buffer_load_dword {v(vT+10)}, {v(t0)}, {srd(SRD_W2)}, 0 offen
                      buffer_load_dword {v(vT+11)}, {v(t0)}, {srd(SRD_WO)}, 0 offen''')
        p(f'''v_and_b32 {v(t0)}, 31, {v(vLANE)}          ; r
              v_lshlrev_b32 {v(t1)}, 7, {v(t0)}          ; r*128
              v_add_u32 {v(t1)}, s{sLDS}, {v(t1)}
              v_add_u32 {v(t1)}, 8192, {v(t1)}
              v_bfe_u32 {v(t0)}, {v(vLANE)}, 1, 3        ; (r>>1)&7
              v_lshrrev_b32 {v(t2)}, 5, {v(vLANE)}       ; hh
              v_xor_b32 {v(t0)}, {v(t0)}, {v(t2)}''')
        for i in range(4):
            p(f'''v_xor_b32 {v(t2)}, {2*i}, {v(t0)}
                  v_lshl_add_u32 {v(vXR+i)}, {v(t2)}, 4, {v(t1)}''')
        p(f'''v_cmp_gt_u32 vcc, 32, {v(vLANE)}
              v_lshlrev_b32 {v(t2)}, 2, {v(vLANE)}
              s_mov_b32 s{sONES}, 0x3f803f80
              s_mov_b32 s{sMASK}, 0xffff0000
              v_cndmask_b32 {v(vFLG)}, {v(t3)}, {v(t2)}, vcc''')
        if c.c3:
            p(f'''v_and_b32 {v(t0)}, 15, {v(vLANE)}
                  v_mul_u32_u24 {v(t0)}, 3072, {v(t0)}
                  v_lshrrev_b32 {v(t2)}, 4, {v(vLANE)}
                  v_lshl_add_u32 {v(t0)}, {v(t2)}, 10, {v(t0)}
                  s_mul_i32 s{sT0}, s{sSLOT}, {16*3072}
                  s_add_u32 s{sT0}, s{sT0}, 384
                  s_or_b32 s{sT1}, s{sKH}, s{sW}
                  s_cselect_b32 s{sT0}, {OOB}, s{sT0}
                  v_cmp_gt_u32 vcc, 48, {v(vLANE)}
                  v_add_u32 {v(t0)}, s{sT0}, {v(t0)}
                  s_mul_i32 s{sT1}, s{sKH}, 3
                  v_cndmask_b32 {v(vPV)}, {v(t3)}, {v(t0)}, vcc''')
            if c.c3 > 1:
                p(f'''v_add_u32 {v(t0)}, s{sT1}, {v(t2)}           ; m: line 4m+3
                      v_and_b32 {v(t1)}, 15, {v(vLANE)}
                      v_mul_u32_u24 {v(t1)}, 3584, {v(t1)}
                      v_lshl_add_u32 {v(t0)}, {v(t0)}, 9, {v(t1)}
                      s_mul_i32 s{sT0}, s{sSLOT}, {16*3584}
                      s_add_u32 s{sT0}, s{sT0}, 384
                      s_lshl4_add_u32 s{sT1}, s{sKH}, 48
                      s_cmp_eq_u32 s{sW}, 1
                      s_cselect_b32 s{sT1}, s{sT1}, 0
                      v_cmp_gt_u32 vcc, s{sT1}, {v(vLANE)}
                      v_add_u32 {v(t0)}, s{sT0}, {v(t0)}
                      s_nop 0
                      v_cndmask_b32 {v(vPV)}, {v(vPV)}, {v(t0)}, vcc''')
        p(f'''s_lshl_b32 s{sT0}, s{sSTRIDE}, 4
              s_lshl_b32 s{sT1}, s{sW}, 3''')
        if c.xrot:
            p(f'''s_lshl_b32 s{sT2}, s{sT8x}, 2
                  s_xor_b32 s{sT1}, s{sT1}, s{sT2}''')
        p(f'''s_xor_b32 s{sT2}, s{sT1}, 4
              s_mul_i32 s{sTAB}, s{sT0}, s{sT1}
              s_mul_i32 s{sTAB+4}, s{sT0}, s{sT2}''')
        for s in (1, 2, 3, 5, 6, 7):
            p(f's_add_u32 s{sTAB+s}, s{sTAB+s-1}, s{sT0}')
        p(f'''s_bitcmp0_b32 s{sJ}, 0
              s_cselect_b32 s{sT1}, 0, 64
              s_mul_i32 s{sT2}, s{sJ}, 448
              s_add_u32 s{sT2}, s{sT2}, s{sT1}
              s_and_b32 s{sT1}, s{sJ}, 6
              s_lshr_b32 s{sT1}, {0x24 if c.urot else 0}, s{sT1}
              s_and_b32 s{sT1}, s{sT1}, 3                ; rot = (j>>1) % 3: units run in the order rot, rot+1, rot+2
              s_cmp_eq_u32 s{sT1}, 2
              s_cselect_b32 s{sUD}, -2, 1
              s_lshl_b32 s{sT1}, s{sT1}, 7
              s_add_u32 s{sT2}, s{sT2}, s{sT1}
              s_lshl_b32 s{sT3}, s{sJ}, 7
              s_add_u32 s{sT3}, s{sT3}, 1024
              s_cmp_eq_u32 s{sROLE}, 0
              s_cselect_b32 s{sT2}, s{sT3}, s{sT2}
              s_cselect_b32 s{sUD}, 8, s{sUD}
              s_lshl_b32 s{sUD}, s{sUD}, 7
              v_lshrrev_b32 {v(t0)}, 2, {v(vLANE)}
              v_mul_u32_u24 {v(t0)}, s{sSTRIDE}, {v(t0)}
              v_and_b32 {v(t1)}, 3, {v(vLANE)}
              v_lshl_add_u32 {v(t0)}, {v(t1)}, 4, {v(t0)}
              v_add_u32 {v(vWL)}, s{sT2}, {v(t0)}
              v_add_u32 {v(vWR)}, 64, {v(vWL)}
              v_lshlrev_b32 {v(vL16)}, 4, {v(vLANE)}''')
        p(f'''v_lshrrev_b32 {v(t0)}, 5, {v(vLANE)}
              v_lshlrev_b32 {v(t0)}, 9, {v(t0)}
              v_bfe_u32 {v(t2)}, {v(vLANE)}, 2, 2
              v_lshl_add_u32 {v(t0)}, {v(t2)}, 6, {v(t0)}
              v_bfe_u32 {v(t2)}, {v(vLANE)}, 4, 1
              v_lshl_add_u32 {v(t0)}, {v(t2)}, 5, {v(t0)}
              v_lshl_add_u32 {v(vB)}, {v(t1)}, 3, {v(t0)}
              v_add_u32 {v(vB+1)}, {REGION}, {v(vB)}
              v_add_u32 {v(vB+2)}, {2*REGION}, {v(vB)}
              v_add_u32 {v(vB+3)}, {3*REGION}, {v(vB)}''')
        p(f'''v_mov_b32 {v(vZERO)}, 0
              s_mov_b64 s[0:1], s[{sKA+14}:{sKA+15}]''')
        for x, _ in self.setup_a() + self.setup_b() + self.setup_h():
            p(x)
        assert c.xrot
        p(f'''v_mov_b32 {v(vTMP+2)}, s{sONES}
              v_mov_b32 {v(vTMP+3)}, s{sONES}
              s_lshl_b32 s{sT1}, s{sKH}, 6
              v_xor_b32 {v(vAB)}, s{sT1}, {v(vXR)}
              v_xor_b32 {v(vAB+1)}, s{sT1}, {v(vXR+1)}''')
        self.fill = []
        def warm():
            p(f's_lshl2_add_u32 s{sT1}, s{sROLE}, s{sW}')
            for k in range(8):
                p(f's_cmp_eq_u32 s{sT1}, {k}')
                p(f's_cbranch_scc1 L_warm{k}')
            p('L_back:')
        if c.pages == 1:
            warm()
        self.stamp(p, 'setup')
        for ch in range(1 if c.wearly == 1 else 2, c.xla):
            self.xdma(p, ch)
            if c.pages == 2 and ch == 1:
                warm()
        self.xchunk(p, 0)
        p(f'''s_waitcnt lgkmcnt(0)
              s_or_b32 s{sT0}, s2, s{sW}
              s_cbranch_scc1 L_ntag
              s_andn2_b32 s{sTAG}, s{sTAG}, 7
              s_mul_i32 s{sTAG}, s{sTAG}, 1664525
              s_add_u32 s{sTAG}, s{sTAG}, {(1013904221 * 8 + 1) & 0xffffffff}
              v_mov_b32 {v(vTAGV)}, s{sTAG}''')
        p('s_mov_b32 exec_hi, 0')
        p.ins.append(self.raw(f'global_store_dword {v(vFLG)}, {v(vTAGV)}, s[0:1] sc1'))
        p('s_mov_b64 exec, -1')
        p.ins.append(self.raw(f'buffer_store_dword {v(vTAGV)}, {v(vFLG)}, {srd(SRD_WS)}, 0 offen sc1'))
        p('L_ntag:')
        self.stamp(p, 'x0')
        R = self.R0 = {}
        first = [(op, 'ua') for op in self.unit(0, 1)]
        for ch in range(1, 8):
            if c.wearly == 2 and ch == 8 - c.xla:
                self.touch(p, 0, 3 if c.wlate == 1 else 1)
            if ch == c.c3ch and c.c3:
                p(f'buffer_load_dword {v(vPV)}, {v(vPV)}, {srd(SRD_T)}, 0 offen')
            if ch + c.xla < 8:
                self.xchunk(p, ch)
            else:
                assert ch >= 3
                k = c.ua5 if ch < 7 else c.ua7
                self.xchunk(p, ch, first[:k], R); first = first[k:]
        self.xfinish(p)
        ub = self.unit(2, 3)
        self.lead = ub[c.nub:]
        self.normalize(p, [x[0] for x in first], ub[:c.nub], R)
        self.tagtok = p(f'global_load_dword {v(vPV)}, {v(vZERO)}, s[0:1] sc1')
        if c.wlate == 2:
            self.touch(p, 2, 3)
        self.stamp(p, 'norm')
        if c.spins:
            p('s_mov_b32 s80, 0')
        self.btok = {}
        p.wait(vm=R['ua'])
        p('s_barrier')
        ent = self.p1_pair(ACC, True)
        for t in range(7):
            self.bread(p, ent, t)
        p(f'''s_add_u32 s{sT1}, s{sJ}, s{sW}
              s_and_b32 s{sT1}, s{sT1}, 2
              s_lshl2_add_u32 s{sT1}, s{sKH}, s{sT1}
              s_lshr_b32 s{sT2}, {0x49 if c.urot else 0x55}, s{sT1}
              s_and_b32 s{sT2}, s{sT2}, 3
              s_lshl_b32 s{sT2}, s{sT2}, 16
              s_add_u32 s{sW22}, s{sW21}, s{sT2}
              s_lshr_b32 s{sT2}, {0x92 if c.urot else 0xaa}, s{sT1}
              s_and_b32 s{sT2}, s{sT2}, 3
              s_lshl_b32 s{sT2}, s{sT2}, 16
              s_add_u32 s{sW23}, s{sW21}, s{sT2}
              s_lshr_b32 s{sT2}, {0x24 if c.urot else 0}, s{sT1}
              s_and_b32 s{sT2}, s{sT2}, 3
              s_lshl_b32 s{sT2}, s{sT2}, 16
              s_add_u32 s{sW21}, s{sW21}, s{sT2}''')
        for x in [f'v_mov_b32 {v(vX)}, {v(vW2B)}'] + [f'v_add_u32 {v(vX+i)}, {7168*i}, {v(vW2B)}' for i in range(1, 4)] + \
                 [f'v_add_u32 {v(vXR+i)}, {4096*(i+1)}, {v(vL16)}' for i in range(4)]:
            p(x)
        p(f'''s_cmp_eq_u32 s{sROLE}, 0
              s_cbranch_scc1 L_attn''')

    def get_tag_check(self, p):
        p.wait(vm=self.tagtok)
        self.retry(p, f'v_cmp_eq_u32 vcc, 0, {v(vPV)}', [], f'global_load_dword {v(vPV)}, {v(vZERO)}, s[0:1] sc1', name='tag')
        p(f'v_readfirstlane_b32 s{sTAG}, {v(vPV)}')
        p(f'v_mov_b32 {v(vTAGV)}, {v(vPV)}')

    UNP = [t for t in range(28) if t % 4 != 3]
    PCK = [t for t in range(32) if t % 4 == 3 or t >= 28]

    def korder(self):
        n = len(self.PCK) - self.c.nins
        m = 8 + self.c.nu2
        return self.UNP[:m] + self.PCK[:n], self.UNP[m:] + self.PCK[n:]

    def xops(self, ch):
        out = []
        for rg in range(4):
            pre = [f's_add_u32 m0, s{sLDS}, {8192 + ch*4096}', f's_xor_b32 s{sT0}, s{sXO}, {ch*128}'] if rg == 0 else []
            out.append(((pre, f'buffer_load_dwordx4 {v(vX+rg)}, {srd(SRD_X)}, s{sT0} offen offset:{rg*1024}{" nt" if ch < self.c.xnt else ""} lds'), ch))
        return out

    def xdma(self, p, ch):
        for op, key in self.xops(ch):
            self.emit_op(p, op, self.xtok, key)

    def stats(self, p, ch, ops=(), R=None):
        S = vT
        ops = list(ops)
        for t in range(4 * ch, 4 * ch + 4):
            if ops:
                op, key = ops.pop(0)
                self.emit_op(p, op, R, key)
            for h in range(2):
                x = v(XF + 4 * t + 2 * h, 2)
                for acc, A_ in ((S, v(vTMP + 2, 2)), (S + 4, x)):
                    p(f'v_mfma_f32_4x4x4_16b_bf16 {v(acc,4)}, {A_}, {x}, {v(acc,4) if (t or h) else 0}')
                    p(self.fill.pop(0) if self.fill else 's_nop 0')
            while len(self.fill) > 2 * (t % 4):
                p(self.fill.pop(0))
            if t in self.UNP:
                self.fill += self.unpack(t)

    def lo(self, t):
        k = self.UNP.index(t) if t in self.UNP else 21
        return 32 + 4 * k if k < 8 else 72 + 4 * (k - 8)

    def unpack(self, t):
        out = []
        for i in range(4):
            out += [f'v_lshlrev_b32 {v(self.lo(t)+i)}, 16, {v(XF+4*t+i)}', f'v_and_b32 {v(XF+4*t+i)}, s{sMASK}, {v(XF+4*t+i)}']
        return out

    def xchunk(self, p, ch, ops=None, R=None):
        p.wait(vm=self.xtok[ch])
        self.stamp(p, f'xc{ch}')
        for i in range(4):
            self.rtok[ch] = p(f'ds_read_b128 {v(XF+16*ch+4*i,4)}, {v(vXR+i)} offset:{ch*4096}')
        if ch == 1:
            for m in range(2):
                self.rtok[ch] = p(f'ds_read_b128 {a(aRES+4*m,4)}, {v(vAB+m)} offset:{ch*4096}')
        if ops is None:
            ops, R = self.xops(ch + self.c.xla), self.xtok
        if ch > 0:
            p.wait(lg=self.rtok[ch - 1])
            self.stats(p, ch - 1, ops, R)
        else:
            for op, key in ops:
                self.emit_op(p, op, R, key)

    def xfinish(self, p):
        p.wait(lg=self.rtok[7])
        self.stamp(p, 'xregs')
        self.stats(p, 7)
        S = vT
        assert not self.fill
        p(f'''s_nop 2
              s_mov_b32 vcc_lo, 0xaaaaaaaa
              s_mov_b32 vcc_hi, 0xaaaaaaaa
              s_mov_b32 s{sT2}, 0xcccccccc
              s_mov_b32 s{sT3}, 0xcccccccc
              v_cndmask_b32 {v(S+4)}, {v(S+4)}, {v(S+5)}, vcc
              v_cndmask_b32 {v(S+6)}, {v(S+6)}, {v(S+7)}, vcc
              v_cndmask_b32 {v(S+4)}, {v(S+4)}, {v(S+6)}, s[{sT2}:{sT3}]
              v_mov_b32 {v(S+1)}, {v(S)}
              v_mov_b32 {v(S+5)}, {v(S+4)}
              s_nop 0
              v_permlane32_swap_b32 {v(S)}, {v(S+1)}
              v_permlane32_swap_b32 {v(S+4)}, {v(S+5)}
              v_add_f32 {v(S)}, {v(S)}, {v(S+1)}
              v_add_f32 {v(S+4)}, {v(S+4)}, {v(S+5)}
              v_mul_f32 {v(S)}, {f32(1/512)}, {v(S)}           ; mean
              v_mul_f32 {v(S+4)}, {f32(1/512)}, {v(S+4)}
              v_fma_f32 {v(S+4)}, -{v(S)}, {v(S)}, {v(S+4)}    ; variance
              v_max_f32 {v(S+4)}, 0, {v(S+4)}
              v_add_f32 {v(S+4)}, {f32(1e-5)}, {v(S+4)}
              v_rsq_f32 {v(S+4)}, {v(S+4)}
              s_nop 0
              v_mul_f32 {v(vAB)}, {f32(LOG2E)}, {v(S+4)}
              v_mul_f32_e64 {v(vAB+1)}, -{v(S)}, {v(vAB)}''')

    def normalize(self, p, ua, ub, R):
        p('.p2align 3')
        sel = f'{v(vAB,2)}, {v(vAB,2)} op_sel:[0,0,1] op_sel_hi:[1,0,1]'
        pre = self.korder()[0]
        m = 8 + self.c.nu2
        if not self.c.uas:
            pre = pre[m:] + pre[:m]
        ride = {self.c.uas + n: (op, 'ua') for n, op in enumerate(ua)}
        free = len(pre) - self.c.uas - len(ua)
        ride.update({len(pre) - 1 - min(2 * (len(ub) - 1 - n), (len(ub) - 1 - n) * free // len(ub)): (op, 'ub') for n, op in enumerate(ub)})
        assert len(ride) == len(ua) + len(ub)

        def step():
            p(f'v_add_u32 {v(vWL)}, s{sUD}, {v(vWL)}')
            p(f'v_add_u32 {v(vWR)}, s{sUD}, {v(vWR)}')
            if self.c.wlate == 4:
                self.touch(p, 2, 3)
        for n, t in enumerate(pre):
            if n == self.c.uas + len(ua):
                step()
            if n in ride:
                p(ride[n][0][0][0])
            if t not in self.UNP:
                for x in self.unpack(t): p(x)
            L, H = self.lo(t), XF + 4 * t
            for r in (L, H, L + 2, H + 2):
                p(f'v_pk_fma_f32 {v(r,2)}, {v(r,2)}, {sel}')
            if n in ride:
                R[ride[n][1]] = p(ride[n][0][1])
            for i in range(4):
                p(f'v_cvt_pk_bf16_f32 {v(H+i)}, {v(L+i)}, {v(H+i)}')
        if self.c.uas + len(ua) >= len(pre):
            for n in range(len(pre), self.c.uas + len(ua)):
                self.emit_op(p, ride[n][0], R, 'ua')
            step()

    def start_stream(self, gl, R, stages):
        c = self.c
        if c.wlate == 3:
            gl[c.ltg]['mem'].append(lambda p: self.touch(p, 2, 3)); gl[c.ltg]['vm'] = True
            gl[c.ltg]['cost'] = gl[c.ltg].get('cost', 0) + 28
        gl[62]['valu'].append(self.get_tag_check)
        pre, ins = self.korder()
        ops, lim = [], {}
        for n, t in enumerate(ins):
            L, H = self.lo(t), XF + 4 * t
            txt = [] if t in self.UNP else self.unpack(t)
            for i in range(4):
                txt += [f'v_fma_f32 {v(L+i)}, {v(L+i)}, {v(vAB)}, {v(vAB+1)}', f'v_fma_f32 {v(H+i)}, {v(H+i)}, {v(vAB)}, {v(vAB+1)}']
            txt += [f'v_cvt_pk_bf16_f32 {v(H+i)}, {v(L+i)}, {v(H+i)}' for i in range(4)]
            ops += [(x, 4) for x in txt]
            lim[len(ops) - 1] = 2 * (len(pre) + n) - 2
        self.norm_spread = lambda: ops and self.spread(gl, ops, 0, 60, lim)
        CL = vT + 4
        frs = [(s, e) for s in stages if s in c.sent for e in range(2)]
        if c.clr0:
            R['clr'] = self.clrtok
            frs = frs[:max(0, len(frs) - c.clr0)]
        if not frs:
            return {}
        gl[0]['valu'] += [f'v_mov_b32 {v(CL+k)}, -1' for k in range(4)]
        gl[0]['cost'] = gl[0].get('cost', 0) + 16
        gi, fixed = c.clr, {}
        for s, e in frs:
            self.put(gl, gi, ([], f'buffer_store_dwordx4 {v(CL,4)}, {self.haddr(s, 0, e)}'), R, 'clr')
            gl[gi]['ld'] = False
            fixed[gi] = c.stc / 20
            gi += c.clrs
        assert gi - c.clrs < 64
        return fixed

    def setup_a(self):
        t0, t1, t2 = vTMP + 1, vTMP + 2, vTMP + 3
        txt = f'''v_lshrrev_b32 {v(t0)}, 3, {v(vLANE)}
              v_and_b32 {v(t1)}, 7, {v(vLANE)}
              v_bfe_u32 {v(t2)}, {v(vLANE)}, 4, 1
              v_lshlrev_b32 {v(t2)}, 2, {v(t2)}
              v_xor_b32 {v(t1)}, {v(t1)}, {v(t2)}
              v_lshlrev_b32 {v(t1)}, 4, {v(t1)}
              v_lshl_add_u32 {v(vW2B)}, {v(t0)}, 10, {v(t1)}
              s_add_u32 s{sT1}, s{sJ}, s{sW}
              s_and_b32 s{sT1}, s{sT1}, 3
              s_lshl2_add_u32 s{sT1}, s{sKH}, s{sT1}
              s_lshl_b32 s{sT2}, s{sCB}, 7
              s_lshl_b32 s{sWOB}, s{sT1}, 16
              s_add_u32 s{sWOB}, s{sWOB}, s{sT2}
              s_mul_i32 s{sW21}, s{sT1}, {224*1024}
              s_add_u32 s{sW21}, s{sW21}, s{sT2}
              s_and_b32 s{sT1}, s{sT1}, 1
              s_xor_b32 s{sT2}, s{sT1}, 1
              s_mul_i32 s{sT2}, s{sT2}, {192*1024}
              s_add_u32 s{sW20}, s{sW21}, s{sT2}
              s_lshl_b32 s{sT1}, s{sT1}, 15
              s_add_u32 s{sW21}, s{sW21}, s{sT1}'''
        return lines(txt)

    def setup_b(self):
        t0, t1, t2 = vTMP + 1, vTMP + 2, vTMP + 3
        if 7 in self.c.sent:
            pol1 = f'''v_lshrrev_b32 {v(t0)}, 4, {v(vLANE)}
              v_lshl_add_u32 {v(t0)}, {v(t0)}, 9, s{sT1}
              v_add_u32 {v(t0)}, {WS_FA - WS_FH - 0x10000}, {v(t0)}
              v_bfe_i32 {v(t1)}, {v(vLANE)}, 3, 1
              v_bfi_b32 {v(vPOL1)}, {v(t1)}, {v(t0)}, {v(vPOLH)}'''
        else:
            pol1 = f'''s_xor_b32 s{sT2}, s{sROLE}, 1
              v_lshrrev_b32 {v(t0)}, 4, {v(vLANE)}
              v_max_u32 {v(t0)}, s{sT2}, {v(t0)}
              v_add_u32 {v(t0)}, s{sJ}, {v(t0)}
              v_and_b32 {v(t0)}, 3, {v(t0)}
              v_lshl_add_u32 {v(vPOL1)}, {v(t0)}, 9, s{sT1}'''
        txt = f'''s_lshl3_add_u32 s{sT1}, s{sRB}, s{sJ}
              s_lshl2_add_u32 s{sT1}, s{sT1}, s{sW}
              s_lshl_b32 s{sFLAG}, s{sT1}, 7
              s_andn2_b32 s{sT1}, s{sFLAG}, {3*512}
              v_lshrrev_b32 {v(t0)}, 4, {v(vLANE)}
              v_max_u32 {v(t0)}, s{sROLE}, {v(t0)}
              v_add_u32 {v(t0)}, s{sJ}, {v(t0)}
              v_and_b32 {v(t0)}, 3, {v(t0)}
              v_lshl_add_u32 {v(vPOLH)}, {v(t0)}, 9, s{sT1}
              {pol1}
              v_lshrrev_b32 {v(t0)}, 5, {v(vLANE)}
              v_lshlrev_b32 {v(t2)}, 4, {v(t0)}
              v_lshlrev_b32 {v(t0)}, 9, {v(t0)}
              v_bfe_u32 {v(t1)}, {v(vLANE)}, 4, 1
              v_lshl_add_u32 {v(t0)}, {v(t1)}, 5, {v(t0)}
              v_bfe_u32 {v(t1)}, {v(vLANE)}, 2, 2
              v_lshl_add_u32 {v(t0)}, {v(t1)}, 7, {v(t0)}
              v_bfe_u32 {v(t1)}, {v(vLANE)}, 3, 1
              v_xor_b32 {v(t1)}, s{sKH}, {v(t1)}
              v_lshl_add_u32 {v(t0)}, {v(t1)}, 6, {v(t0)}
              v_and_b32 {v(t1)}, 3, {v(vLANE)}
              v_lshl_add_u32 {v(vP2B)}, {v(t1)}, 3, {v(t0)}
              {f'v_lshlrev_b32 {v(t2)}, 4, {v(t1)}' if self.c.outl else 's_nop 0'}
              {f'v_lshrrev_b32 {v(t1)}, 2, {v(vLANE)}' if self.c.outl else f'v_and_b32 {v(t1)}, 31, {v(vLANE)}'}
              v_lshl_add_u32 {v(t2)}, {v(t1)}, 10, {v(t2)}
              s_lshl2_add_u32 s{sT1}, s{sRB}, s{sW}
              s_lshl_b32 s{sT1}, s{sT1}, 15
              s_lshl1_add_u32 s{sT2}, s{sCB}, s{sKH}
              s_lshl_b32 s{sT2}, s{sT2}, 6
              s_add_u32 s{sT1}, s{sT1}, s{sT2}
              v_add_u32 {v(vRO)}, s{sT1}, {v(t2)}'''
        return lines(txt)

    def setup_h(self):
        out = []
        for i in range(4):
            out += lines(f'''s_add_u32 s{sT1}, s{sJ}, {i}
              s_and_b32 s{sT1}, s{sT1}, 3
              s_lshl2_add_u32 s{sT1}, s{sKH}, s{sT1}
              s_mul_i32 s{sT1}, s{sT1}, {18*1024}
              s_add_u32 s{sHB+i}, s{sHST}, s{sT1}''')
        return out

    def setup_p2(self):
        out = [f'v_mov_b32 {v(vP2)}, {v(vP2B)}', f'v_xor_b32 {v(vP2+1)}, 64, {v(vP2B)}']
        for i in range(1, 4):
            out += [f'v_add_u32 {v(vP2+2*i)}, {i*REGION}, {v(vP2)}', f'v_add_u32 {v(vP2+2*i+1)}, {i*REGION}, {v(vP2+1)}']
        return [(x, 4) for x in out]

    def newgaps(self, n):
        return [dict(pre=[], mem=[], valu=[]) for _ in range(n)]

    def p1_pair(self, accs, transposed):
        ko = sum(self.korder(), [])
        e0, e1 = self.p1_entries(0, accs[0], transposed, ko), self.p1_entries(1, accs[1], transposed, ko)
        return [e for pr in zip(e0, e1) for e in pr]

    def p1_entries(self, g, acc, transposed, ko=range(32)):
        out = []
        for t in ko:
            off = self.gslot[g] * 8192 + (t & 7) * 1024
            x = v(XF + 4 * t, 4)
            cin = v(acc, 16) if out else '0'
            mf = (lambda w, x=x, cin=cin: f'{MF} {v(acc,16)}, {w}, {x}, {cin}') if transposed else \
                 (lambda w, x=x, cin=cin: f'{MF} {v(acc,16)}, {x}, {w}, {cin}')
            out.append((mf, vB + (t >> 3), off, off + 256))
        return out

    def p2_entries(self, order, frag):
        out, first, late = [], {}, []
        nd = max(1, self.c.defer)
        seen = set()

        def ent(s, i, e, nh):
            off = self.w2off(s) + e * 2048
            acc = ACC2[nh]
            cin = v(acc, 16) if nh in seen else '0'
            seen.add(nh)
            return (lambda w, h=frag[(s, i)](e): f'{MF} {v(acc,16)}, {w}, {h}, {cin}', vP2 + 2 * i + nh, off, off + 1024)
        for n, (s, i) in enumerate(order):
            first[(s, i)] = len(out)
            if n < len(order) - nd:
                out += [ent(s, i, e, nh) for e, nh in ((0, 1), (0, 0), (1, 1), (1, 0))]
            else:
                out += [ent(s, i, e, 1) for e in range(2)]
                late += [(s, i, e, 0) for e in range(2)]
        nsend = len(out)
        out += [ent(*x) for x in late]
        return out, first, nsend

    def bread(self, p, ent, n):
        q = aB + 4 * (n % 8)
        p(f'ds_read_b64_tr_b16 {a(q,2)}, {v(ent[n][1])} offset:{ent[n][2]}')
        self.btok[n] = p(f'ds_read_b64_tr_b16 {a(q+2,2)}, {v(ent[n][1])} offset:{ent[n][3]}')

    def run_stream(self, p, ent, gl, stamps, hold=()):
        def run(items):
            for it in items:
                if callable(it): it(p)
                else: p(it)
        N = len(ent)
        p.wait(lg=self.btok[3])
        self.stamp(p, 'p1st')
        for n in range(N):
            gp = gl[n]
            run(gp['pre'])
            p(ent[n][0](a(aB + 4 * (n % 8), 4)))
            run(gp['mem'])
            if n in hold:
                for k in range(4, 7):
                    self.bread(p, ent, n + k)
            if n + 7 < N and not any(0 < h - n <= 3 for h in hold):
                self.bread(p, ent, n + 7)
            if n % 4 == 3 and n + 1 < N:
                p.wait(lg=self.btok[min(n + 4, N - 1)])
            run(gp['valu'])
            run(gp.get('late', []))
            if n in stamps:
                self.stamp(p, stamps[n])

    def used(self, gl, gi):
        gp = gl[gi]
        rd = 40 if gi in self.hold else 8 if any(0 < h - gi <= 3 for h in self.hold) else 16
        return rd + (4 if gi % 4 == 3 else 0) + gp.get('cost', 0) + gl[gi + 1].get('precost', 0)

    def spread(self, gaps, ops, g0, g1, lim={}):
        from functools import lru_cache
        val = [o for o in ops if o[0] != 'MEM']
        memafter = {}
        n = 0
        for o in ops:
            if o[0] == 'MEM': memafter.setdefault(n - 1, []).append(o[1])
            else: n += 1
        INF = 1e18

        @lru_cache(None)
        def best(gi, k, carry):
            base = self.used(gaps, gi) + carry
            if gi > g1:
                return ((max(32, base) if k == n else INF), 0)
            res = (INF, 0)
            if any(q >= k and g < gi for q, g in lim.items()):
                return res
            tot, nxt = base, 0
            for m in range(0, n - k + 1):
                if m:
                    tot += val[k + m - 1][1]
                    nxt += 32 * len(memafter.get(k + m - 1, []))
                    if tot > 200: break
                cst = max(32, tot) + 0.002 * max(0, tot - 32) ** 2 + 0.0001 * (n - k - m) + best(gi + 1, k + m, nxt)[0]
                if cst < res[0]:
                    res = (cst, m)
            return res
        k, carry, last = 0, 0, None
        assert best(g0, 0, 0)[0] < INF
        plan = []
        for gi in range(g0, g1 + 1):
            m = best(gi, k, carry)[1]
            plan.append((gi, k, m))
            carry = sum(32 * len(memafter.get(q, [])) for q in range(k, k + m))
            k += m
        for gi, k, m in plan:
            for q in range(k, k + m):
                gaps[gi]['valu'].append(val[q][0])
                gaps[gi]['cost'] = gaps[gi].get('cost', 0) + val[q][1]
                for it in memafter.get(q, []):
                    gaps[gi + 1]['mem'].append(it); gaps[gi + 1]['vm'] = True
                    gaps[gi + 1]['cost'] = gaps[gi + 1].get('cost', 0) + 32
                    last = gi + 1
        return last

    def put(self, gl, gi, op, R, key):
        first = not gl[gi].get('ld')
        gl[gi]['cost'] = gl[gi].get('cost', 0) + (32 if 'store_dwordx4' in op[1] else 8)
        k = 'precost' if first else 'cost'
        gl[gi][k] = gl[gi].get(k, 0) + sum(12 if callable(x) else 4 for x in op[0])
        if first:
            gl[gi]['pre'] += op[0]
            gl[gi]['mem'].append(lambda p, mem=op[1], key=key: R.__setitem__(key, p(mem)))
        else:
            gl[gi]['mem'].append(lambda p, op=op, key=key: self.emit_op(p, op, R, key))
        gl[gi]['vm'] = gl[gi]['ld'] = True

    def sched(self, gl, queues, R, gT, fixed, last, p2):
        c = self.c
        pos, npoll, credit, lastchk = {}, 0, 1.0, {}
        queues = [list(q) for q in queues]
        gi = 0
        while any(queues):
            left = sum(len(q) for q in queues)
            opc = c.opc
            if gi >= p2:
                opc = min(opc, sum(gT(k) for k in range(gi, last + 1)) / (left + sum(x for k, x in fixed.items() if gi <= k <= last)))
            credit = min(credit + gT(gi) / opc - fixed.get(gi, 0), max(1.6, gT(gi) / opc + 0.6))
            must = left - (last - gi)
            n = 0
            while any(queues) and ((credit >= 1.0 and n < max(1, round(gT(gi) / opc))) or n < must):
                q = next((q for q in queues if q and q[0].get('rel', 0) <= gi and not (q[0].get('need') and gi == self.nochk)), None)
                if q is None:
                    break
                it = q.pop(0)
                op = it['op']
                if it.get('need'):
                    pv = (vPV, vPV + 1, vTCH)[npoll % 3]; npoll += 1
                    base, voff = it['need']
                    pg = self.adv(gT, gi, -c.plc)
                    assert pg > lastchk.get(pv, -1) and gi != self.nochk, 'poll overlap'
                    lastchk[pv] = gi
                    gl[pg]['cost'] = gl[pg].get('cost', 0) + 12
                    gl[pg]['mem'].append(lambda p, base=base, voff=voff, pv=pv: R.__setitem__(
                        ('poll', base), self.poll_issue(p, voff, base, pv)))
                    gl[gi - 1]['late'] = [lambda p, base=base: self.poll_check(p, R[('poll', base)], part=1)]
                    gl[gi - 1]['cost'] = gl[gi - 1].get('cost', 0) + 8
                    gl[gi]['mem'].append(lambda p, base=base: (self.poll_check(p, R[('poll', base)], part=2), self.stamp(p, f'f{base - 1}')))
                    gl[gi]['cost'] = gl[gi].get('cost', 0) + 8
                    gl[gi - 1]['vcc'] = gl[gi]['vcc'] = True
                self.put(gl, gi, op, R, it['key'])
                gl[gi]['valu'] += it.get('after', [])
                pos.setdefault(('first', it['key']), gi)
                pos[it['key']] = gi
                credit -= it.get('cost', 1.0); n += 1
            gi += 1
        return pos

    @staticmethod
    def adv(gT, gi, cyc):
        t = 0
        while t < abs(cyc):
            if cyc > 0:
                t += gT(gi); gi += 1
            else:
                gi -= 1; t += gT(gi)
        return gi

    @staticmethod
    def blk(ops, key, rel=0, after=(), cost=1.0):
        out = [dict(op=op, key=key, rel=rel, cost=cost) for op in ops]
        out[-1]['after'] = list(after)
        return out

    def silu_ops(self, g, acc, storefn):
        T, O = vT, vT + 8 + 8 * g
        ops = []
        for n in range(-2, 18):
            if 0 <= n + 2 < 16: ops.append((f'v_exp_f32_e64 {v(T+(n+2)%5)}, -{v(acc+n+2)}', 8))
            if 0 <= n + 1 < 16: ops.append((f'v_add_f32 {v(T+(n+1)%5)}, 1.0, {v(T+(n+1)%5)}', 4))
            if 0 <= n < 16: ops.append((f'v_rcp_f32 {v(T+n%5)}, {v(T+n%5)}', 8))
            if 0 <= n - 1 < 16: ops.append((f'v_mul_f32 {v(acc+n-1)}, {v(acc+n-1)}, {v(T+(n-1)%5)}', 4))
            m = n - 2
            if 0 <= m < 16 and m % 2 == 1:
                ops.append((f'v_cvt_pk_bf16_f32 {v(O+m//2)}, {v(acc+m-1)}, {v(acc+m)}', 4))
                if m % 8 == 7:
                    ops.append(('MEM', storefn(m // 8, O + 4 * (m // 8))))
        return ops

    def phi_ops(self, acc, O, zreg=None):
        T = vT
        ops = []
        for n in range(-1, 18):
            if 0 <= n + 1 < 16:
                ops.append((f'v_exp_f32_e64 {v(T+(n+1)%6)}, {v(acc+n+1)} clamp', 8))
                ops.append((f'v_max_f32 {v(acc+n+1)}, s{sPHC}, {v(acc+n+1)}', 4))
            if 0 <= n < 16:
                ops.append((f'v_fmac_f32 {v(T+n%6)}, s{sLN2}, {v(acc+n)}', 4))
            m = n - 1
            if 0 <= m < 16 and m % 2 == 1:
                ops.append((f'v_cvt_pk_bf16_f32 {v(O+m//2)}, {v(T+(m-1)%6)}, {v(T+m%6)}', 4))
                if zreg is not None:
                    if m == 1:
                        ops.append((f'v_add_f32 {v(zreg)}, {v(T+(m-1)%6)}, {v(T+m%6)}', 4))
                    else:
                        ops.append((f'v_add_f32 {v(zreg)}, {v(zreg)}, {v(T+(m-1)%6)}', 4))
                        ops.append((f'v_add_f32 {v(zreg)}, {v(zreg)}, {v(T+m%6)}', 4))
        return ops

    def flag_at(self, gl, gi, R, key, step):
        def f(p):
            p.wait(vm=R[key])
            p(f's_add_u32 s{sSPIN}, s{sFLAG}, {step << 16}')
            p(f'buffer_store_dword {v(vTAGV)}, {v(vFLG)}, {srd(SRD_WS)}, s{sSPIN} offen sc1')
        gl[gi]['mem'].append(f)
        gl[gi]['cost'] = gl[gi].get('cost', 0) + 20

    def barrier_at(self, gl, gi, R, keys=(), lg=None):
        def f(p):
            toks = [R[k] for k in keys]
            p.wait(vm=max(toks) if toks else None, lg=R[lg] if lg else None)
            p('s_barrier')
        gl[gi]['pre'].insert(0, f)
        gl[gi]['precost'] = gl[gi].get('precost', 0) + 8

    def use_waits(self, gl, base, first, R, pos, loaded, areg):
        for n, blk in enumerate(loaded):
            gi = base + first[blk]
            assert pos[('h',) + blk] < gi - (2 if blk[0] in self.c.sent else 0), (blk, pos[('h',) + blk], gi)
            if blk[0] not in self.c.sent:
                gl[gi]['pre'].append(lambda p, blk=blk: p.wait(vm=R[('h',) + blk]))
                continue
            T = ACC[1]
            chk = [f'v_accvgpr_read_b32 {v(T)}, {a(areg[blk])}', f'v_accvgpr_read_b32 {v(T+1)}, {a(areg[blk]+4)}',
                   f'v_max_u32 {v(T)}, {v(T)}, {v(T+1)}', f'v_cmp_eq_u32 vcc, -1, {v(T)}']
            grp = [b for b in loaded[n:n + 4] if pos[('h',) + b] < gi and b[0] in self.c.sent]
            loads = [op[1] for b in grp for op in self.hblock(b[0], b[1], areg[b])]

            def f(p, blk=blk, chk=chk):
                p.wait(vm=R[('h',) + blk])
                p('\n'.join(chk))

            def g(p, blk=blk, chk=chk, loads=loads):
                self.retry(p, '\n    '.join(chk), [], '\n    '.join(loads), done=True, name=f'h{blk[0]}{blk[1]}')
                if blk[1] == 1:
                    self.stamp(p, f'ck{blk[0]}')
            assert not gl[gi - 2].get('vcc') and not gl[gi - 1].get('vcc')
            gl[gi - 2]['valu'].append(f)
            gl[gi - 2]['cost'] = gl[gi - 2].get('cost', 0) + 20
            gl[gi - 1]['valu'].insert(0, g)
            gl[gi - 1]['cost'] = gl[gi - 1].get('cost', 0) + 8

    def send_ops(self, R):
        S = ACC2[1]
        slot = [0, 1, 2, 4, 5, 6, 8, 9]
        ops = []
        for i in range(8):
            ops.append((f'v_cvt_pk_bf16_f32 {v(GB+slot[i])}, {v(S+2*i)}, {v(S+2*i+1)}', 4))
            if i in (2, 5, 7):
                q = slot[i] // 4
                ops.append(('MEM', lambda p, q=q: R.__setitem__('tx', p(
                    f'buffer_store_dwordx4 {v(GB+4*q,4)}, {v(vL16)}, {srd(SRD_WS)}, s{sHST} offen offset:{q*1024} sc1'))))
        return ops

    def rx_loads(self):
        return [f'buffer_load_dwordx4 {v(GB+16+4*q,4)}, {v(vL16)}, {srd(SRD_WS)}, s{sHST1} offen offset:{q*1024} sc1' for q in range(3)]

    def plan_send(self, gl, NS, N, R):
        if self.c.defer < 6:
            return
        last = self.spread(gl, self.send_ops(R), NS + 3, NS + 5)
        gl[last]['valu'].append(lambda p: self.stamp(p, 'sent'))
        gr = min(last + self.c.rxl, N - 1)
        def rx(p):
            p.wait(vm=R['tx'])
            for x in self.rx_loads():
                R['rx'] = p(x)
        gl[gr]['mem'].append(rx)

    def resid_ops(self, R):
        ops = [(f'v_accvgpr_read_b32 {v(vRES+i)}, {a(aRES+i)}', 4) for i in range(8)]
        for m in range(2):
            for d in range(2):
                ops.append((f'v_permlane32_swap_b32 {v(vRES+4*m+d)}, {v(vRES+4*m+2+d)}', 4))
        for i in range(8):
            ops += [(f'v_lshlrev_b32 {v(vU+2*i)}, 16, {v(vRES+i)}', 4), (f'v_and_b32 {v(vU+2*i+1)}, s{sMASK}, {v(vRES+i)}', 4)]
        for r in (3, 7, 10, 11):
            ops.append((f'v_mov_b32 {v(GB+r)}, {v(vTAGV)}', 4))
        ops += lines(f'''s_lshl3_add_u32 s{sHST}, s{sRB}, s{sCB}
              s_lshl1_add_u32 s{sHST}, s{sHST}, s{sKH}
              s_lshl2_add_u32 s{sHST}, s{sHST}, s{sW}
              s_lshl_b32 s{sHST}, s{sHST}, 12
              s_add_u32 s{sHST}, s{sHST}, {WS_X}
              s_xor_b32 s{sHST1}, s{sHST}, {4*4096}
              s_mov_b32 s{sLN2}, {f32(LN2)}''')
        if self.c.outl:
            t0, t1 = vTMP + 1, vTMP + 2
            ops += lines(f'''v_and_b32 {v(t0)}, 31, {v(vLANE)}
              v_mul_u32_u24 {v(t0)}, 80, {v(t0)}
              v_lshrrev_b32 {v(t1)}, 5, {v(vLANE)}
              v_lshl_add_u32 {v(t0)}, {v(t1)}, 3, {v(t0)}
              v_add_u32 {v(vWL)}, s{sLDS}, {v(t0)}
              v_lshrrev_b32 {v(t0)}, 2, {v(vLANE)}
              v_mul_u32_u24 {v(t0)}, 80, {v(t0)}
              v_and_b32 {v(t1)}, 3, {v(vLANE)}
              v_lshl_add_u32 {v(t0)}, {v(t1)}, 4, {v(t0)}
              v_add_u32 {v(vWR)}, s{sLDS}, {v(t0)}
              s_movk_i32 s{sFLAG}, 16384''')
        return ops

    def hitems(self, blocks, areg, need, rel):
        items = []
        for b in blocks:
            ops = self.hblock(b[0], b[1], areg[b])
            items += [dict(op=ops[0], key=('h',) + b, need=need.get(b), rel=rel[b[0]]), dict(op=ops[1], key=('h',) + b)]
        return items

    def gates(self, i0):
        c = self.c
        need, gate, seen = {}, {}, -1
        for s in range(7):
            if s in c.sent:
                continue
            gate[s] = min(g for g in c.fset if g >= s)
            if gate[s] > seen:
                need[(s, i0)] = (gate[s] + 1, vPOL1 if (gate[s] == 1 and 7 in c.sent) else vPOLH)
                seen = gate[s]
        if 7 not in c.sent:
            need[(7, 1 - i0)] = (WS_FO >> 16, vPOL1)
        return need, gate

    def ffn(self, p):
        c = self.c
        R = dict(self.R0)
        P2 = 7 * 32
        self.hold = (60, 124, 156)
        self.nochk = -1
        self.gslot = (0, 1, 2, 3, 4, 0, 1)
        self.w2map = (4, 5, 6, 7, 8, 9, 0, 1, 2)
        self.outs = 3 * 4096
        fo = lambda *ss: [(s, i) for s in ss for i in (1, 2, 3)]
        order = [(s, 0) for s in range(5)] + fo(0, 1, 2) + [(5, 0)] + fo(3) + [(6, 0)] + fo(4, 5, 6) + \
                [(s, i) for s in (7, 8) for i in range(4)]
        loaded = [b for b in order if not (b[0] < 7 and b[1] == 0)]
        frag = {}
        for s in range(7):
            frag[(s, 0)] = lambda e, s=s: v(vT + 8 + 8 * s + 4 * e, 4)
        areg = {b: aH + 8 * (n % NRING) for n, b in enumerate(loaded)}
        for b in loaded:
            frag[b] = lambda e, b=b: a(areg[b] + 4 * e, 4)
        X = (ACC[0], ACC[1], vT + 48)
        ent = self.p1_pair(X, True)
        for g in range(2, 7):
            ent += self.p1_entries(g, X[g % 3], True)
        e2, first, NS = self.p2_entries(order, frag)
        ent += e2; NS += P2
        N = len(ent)
        gl = self.newgaps(N + 2)

        def storefn(g):
            return lambda s, reg: (lambda p: R.__setitem__(('st', g), p(f'buffer_store_dwordx4 {v(reg,4)}, {self.haddr(g, 0, s)}')))
        gl[1]['valu'] += [x for x, _ in lines(f"""s_and_b32 s{sT1}, s{sJ}, 6
              s_lshr_b32 s{sT1}, {0x49 if c.urot else 0x55}, s{sT1}
              s_and_b32 s{sT1}, s{sT1}, 3
              s_cmp_eq_u32 s{sT1}, 2
              s_cselect_b32 s{sLN2}, -2, 1
              s_lshl_b32 s{sLN2}, s{sLN2}, 7
              s_bitcmp0_b32 s{sJ}, 0
              s_cselect_b32 s{sPHC}, 6, -1
              s_lshl_b32 s{sT1}, s{sT1}, 1
              s_sub_u32 s{sPHC}, s{sPHC}, s{sT1}
              s_lshl_b32 s{sPHC}, s{sPHC}, 6""")]
        gl[1]['cost'] = 44
        fixed = self.start_stream(gl, R, range(7))
        stg = {g: 32 * g + 96 if g < 5 else P2 + (g - 4) * c.e5 for g in range(7)}
        for g in range(7):
            fixed[stg[g]] = fixed[stg[g] - (14 if g < 5 else c.e5 // 2)] = c.stc / 10
        w2 = lambda s, rel=0: self.blk(self.w2stage(s), ('w2', s), rel)
        qw = self.blk(self.lead, 'ub', 0, [f'v_add_u32 {v(vWL)}, s{sPHC}, {v(vWL)}', f'v_add_u32 {v(vWR)}, s{sLN2}, {v(vWR)}']) + \
            self.blk([self.wdma(4, s, False) for s in range(8)], 'uh', 0, [f'v_subrev_u32 {v(vWL)}, 64, {v(vWR)}'], 2.0) + \
            self.blk(self.unit(0, 1), 'u2', 60) + w2(0, c.b92) + w2(1) + w2(2, 124) + w2(3) + w2(4, 156) + w2(5) + w2(6, 188) + w2(7) + w2(8, 220)
        need, gate = self.gates(1)
        gT = lambda gi: 36 if gi < 64 else 40 if gi < P2 else max(36, 22 + 500 / c.e5) if gi < P2 + 2 * c.e5 else c.gt2
        rel = {s: self.adv(gT, stg[s], c.visc + 100) if s in c.sent else self.adv(gT, stg[gate[s]], c.flc + c.visc + c.plc) for s in range(7)}
        rel[7] = rel[8] = c.orel
        pos = self.sched(gl, [qw, self.hitems(loaded, areg, need, rel)], R, gT, fixed, NS - 1 - c.lag, c.p2f)
        assert pos['ub'] < 48 and pos['uh'] < 110 and pos['u2'] < 140 and pos[('w2', 3)] < 180 and pos[('w2', 5)] < 210, 'ffn deadline'
        self.barrier_at(gl, 60, R, ['ub'])
        if c.b92 == 92:
            self.barrier_at(gl, 92, R)
        self.barrier_at(gl, 124, R, ['uh'])
        self.barrier_at(gl, 156, R, ['u2'])
        self.barrier_at(gl, 188, R, [('w2', 3)])
        self.barrier_at(gl, 220, R, [('w2', 5)])
        gb = P2 + first[(6, 0)] - 8
        assert pos[('w2', 8)] < gb - 16
        self.barrier_at(gl, gb, R, [('w2', 8)])
        if c.verbose:
            print('ffn', {k: x for k, x in pos.items() if k[0] != 'first'}, {k: P2 + x for k, x in first.items()}, NS, N)
        self.use_waits(gl, P2, first, R, pos, loaded, areg)
        self.norm_spread()
        self.spread(gl, self.setup_p2(), 194, 210)
        for g in range(7):
            lo, hi = (32 * g + 64 + 2 * (g == 0), 32 * g + 95) if g < 5 else (P2 + (g - 5) * c.e5, P2 + (g - 4) * c.e5 - 1)
            st = self.spread(gl, self.silu_ops(g, X[g % 3], storefn(g)), lo, hi)
            if g in c.fset and g not in c.sent:
                self.flag_at(gl, self.adv(gT, st, c.flc), R, ('st', g), g + 1)
            if g >= 4:
                assert st + 1 < P2 + first[(g, 0)]
                gl[st]['valu'].append(lambda p, g=g: self.stamp(p, f'st{g}'))
        self.info = pos
        self.spread(gl, self.resid_ops(R), NS - 40, NS - 4)
        self.plan_send(gl, NS, N, R)
        stamps = {32 * g + 31: f'g{g}' for g in range(6)}
        stamps.update({P2 - 1: 'p1end'})
        stamps.update({P2 + 16 * k + 15: f'pc{k}' for k in range(8)})
        self.run_stream(p, ent, gl, stamps, hold=self.hold)
        self.finish(p, R)

    def attn(self, p):
        c = self.c
        R = dict(self.R0)
        PK = (vT + 8, vT + 16)
        VP = vT + 24
        KV = vT + 32
        CS = vT + 48
        Z = (vT + 56, vT + 57)
        SCR = 2 * 8192
        vSW, vSR = vT + 58, vT + 59
        t0, t1, t2 = vTMP + 1, vTMP + 2, vTMP + 3
        P2 = 6 * 32
        self.hold = (60, 124)
        self.nochk = P2 + c.sec
        self.gslot = (0, 1, 2, 3, 0, 1)
        self.w2map = (8, 9, 5, 6, 7, 0, 1, 2, 3)
        self.outs = 8 * 4096
        assert c.sec >= 16
        order = [(s, i) for s in range(c.own) for i in range(4)] + [(7, 0), (8, 0)] + \
                [(s, i) for s in range(c.own, 7) for i in range(4)] + [(s, i) for s in (7, 8) for i in (1, 2, 3)]
        loaded = [b for b in order if not (b[0] >= 7 and b[1] == 0)]
        frag = {(7, 0): lambda e: v(KV + 4 * e, 4), (8, 0): lambda e: v(KV + 8 + 4 * e, 4)}
        areg = {b: aH + 8 * (n % NRING) for n, b in enumerate(loaded)}
        for b in loaded:
            frag[b] = lambda e, b=b: a(areg[b] + 4 * e, 4)
        araw = {s: aRES - 16 * (9 - s) for s in range(5, 9)}
        X = (ACC[0], ACC[1], KV, ACC[0], ACC[1], ACC[0])
        ent = self.p1_pair(X, False)
        for g in range(2, 6):
            ent += self.p1_entries(g, X[g], g >= 4)
        e2, first, NS = self.p2_entries(order, frag)
        ent += e2; NS += P2
        N = len(ent)
        gl = self.newgaps(N + 2)
        G = lambda g: gl[32 * g:32 * g + 32]
        setup = f"""s_mov_b32 s{sLN2}, {f32(LN2)}
              s_mov_b32 s{sPHC}, {f32(1e-6/LN2)}
              s_mov_b32 s{sSEL}, 0x0000ffff
              s_mov_b32 s{sSEL+1}, 0x0000ffff
              s_lshl2_add_u32 s{sT1}, s{sJ}, s{sW}
              s_lshl_b32 s{sKVB}, s{sT1}, 14
              s_add_u32 s{sKVB}, s{sKVB}, {WS_C}
              s_lshl_b32 s{sT1}, s{sRB}, 10
              s_add_u32 s{sKVF}, s{sKVB}, s{sT1}
              s_andn2_b32 s{SRD_T}, s{sKVF}, 0xfff
              s_xor_b32 s{SRD_T+1}, s{SRD_T}, 0x1000
              s_xor_b32 s{SRD_T+2}, s{SRD_T}, 0x2000
              s_xor_b32 s{SRD_T+3}, s{SRD_T}, 0x3000
              v_add_u32 {v(vSW)}, s{sLDS}, {v(vL16)}
              s_lshl_b32 s{sT1}, s{sW}, 10
              v_add_u32 {v(vSR)}, s{sT1}, {v(vL16)}"""
        for pr in range(2):
            gg = G(3 + pr)
            acc = X[2 + pr]
            for i in range(8):
                gg[3 + i // 4]['valu'].append(f'v_cvt_pk_bf16_f32 {v(VP+i)}, {v(acc+2*i)}, {v(acc+2*i+1)}')
            gg[6]['pre'].append(f'{MF} {v(KV,16)}, {v(PK[pr],4)}, {v(VP,4)}, 0')
            gg[6]['pre'].append(f'{MF} {v(KV,16)}, {v(PK[pr]+4,4)}, {v(VP+4,4)}, {v(KV,16)}')
            for i in range(8):
                gg[9 + i // 4]['valu'].append(f'v_cndmask_b32 {v(CS+i)}, {v(KV+8+i)}, {v(KV+i)}, s[{sSEL}:{sSEL+1}]')
            for h in range(2):
                gg[10 + h]['mem'].append(lambda p, pr=pr, h=h: R.__setitem__(
                    'lw', p(f'ds_write_b128 {v(vSW)}, {v(CS+4*h,4)} offset:{SCR + (2*pr+h)*1024}')))
        for gg in (G(3), G(4)):
            for k, x in ((3, 16), (4, 16), (5, 64), (9, 16), (10, 56), (11, 40)):
                gg[k]['cost'] = gg[k].get('cost', 0) + x
        RD, PB = KV, VP
        G(4)[1]['valu'] += [f'v_permlane32_swap_b32 {v(Z[0])}, {v(Z[1])}', f'v_add_u32 {v(t2)}, {2*REGION}, {v(vSR)}']
        G(4)[12]['valu'] += [f'v_add_f32 {v(PB+2)}, {v(Z[0])}, {v(Z[1])}', f'v_mov_b32 {v(PB+3)}, {v(vTAGV)}']
        self.barrier_at(gl, 128 + 14, R, [('w2', 2)], lg='lw')
        for ww in range(4):
            G(4)[14]['mem'].append(lambda p, ww=ww: R.__setitem__(
                'lr', p(f'ds_read_b128 {v(RD+4*ww,4)}, {v(vSR if ww < 2 else t2)} offset:{SCR + (ww%2)*REGION}')))
        G(4)[16]['valu'] += [lambda p: p.wait(lg=R['lr'])]
        for i in range(4):
            G(4)[16]['valu'] += [f'v_add_f32 {v(RD+i)}, {v(RD+i)}, {v(RD+4+i)}']
            G(4)[17]['valu'] += [f'v_add_f32 {v(RD+8+i)}, {v(RD+8+i)}, {v(RD+12+i)}']
            G(4)[18]['valu'] += [f'v_add_f32 {v(RD+i)}, {v(RD+i)}, {v(RD+8+i)}']
        G(4)[18]['valu'] += [f'v_cvt_pk_bf16_f32 {v(PB)}, {v(RD)}, {v(RD+1)}', f'v_cvt_pk_bf16_f32 {v(PB+1)}, {v(RD+2)}, {v(RD+3)}']
        self.put(gl, 128 + 19, ([], f'buffer_store_dwordx4 {v(PB,4)}, {v(vL16)}, {srd(SRD_WS)}, s{sKVF} offen sc1'), R, 'kvst')
        gl[128 + 19]['valu'].append(lambda p: self.stamp(p, 'kvst'))
        fixed = self.start_stream(gl, R, (7, 8))
        fixed[147] = c.stc / 10
        for gi in range(86, 250, 17):
            fixed[gi] = fixed.get(gi, 0) + c.stc / 20
        assert (7 in c.sent) == (8 in c.sent)
        if 7 in c.sent:
            self.flag_at(gl, 80, R, 'clr', WS_FA >> 16)
        SEC = P2 + c.sec
        for k in range(4):
            fixed[SEC + 3 + 2 * k] = c.sto / 10
        w2 = lambda s, rel=0: self.blk(self.w2stage(s), ('w2', s), rel)
        w2r = lambda s, rel=0: self.blk(self.w2stage(s, araw[s]), ('w2', s), rel)
        qw = self.blk(self.lead, 'ub', 0, [f'v_subrev_u32 {v(vWL)}, 2048, {v(vWL)}', f'v_subrev_u32 {v(vWR)}, 2048, {v(vWR)}']) + \
            w2(0) + w2(1) + w2r(5) + self.blk(self.unit(0, 1), 'q', 60) + w2(2, 92) + w2r(6) + w2r(7) + w2(3, 124) + w2(4) + w2r(8)
        gld = lambda i: f'buffer_load_dwordx4 {v(GB+4*i,4)}, {v(vL16)}, {srd(SRD_WS)}, s{SRD_T + i//4} offen offset:{(i%4)*1024} sc1'
        need, gate = self.gates(0)
        rel = dict(zip(range(9), c.arel))
        qh = self.hitems(loaded[:4], areg, need, rel) + [dict(op=([], gld(i)), key=('gc', i), rel=c.gstart) for i in range(16)] + \
            self.hitems(loaded[4:], areg, need, rel)
        WR0, WR1 = 189, SEC
        gT = lambda gi: 34 if gi < 64 else 37 if gi < WR0 else c.gta if gi < SEC - 1 else c.gts if gi < SEC else \
            c.gto if gi <= SEC + c.ospan else c.gt2
        pos = self.sched(gl, [qw, qh], R, gT, fixed, NS - 1 - c.lag, c.p2a)
        assert pos['ub'] < 48 and pos['q'] < 116 and pos[('w2', 2)] < 136 and pos[('w2', 8)] < 170, 'attn deadline'
        assert all(pos[('gc', i)] > 164 + i for i in range(16))
        if c.verbose:
            print('attn', {k: x for k, x in pos.items() if k[0] != 'first'}, {k: P2 + x for k, x in first.items()}, NS, N)
        self.barrier_at(gl, 60, R, ['ub'])
        self.barrier_at(gl, 92, R)
        self.barrier_at(gl, 124, R, ['q'])
        self.barrier_at(gl, 188, R, [('w2', 8)])
        SM = CS
        ID = VP + 4

        def sums(i):
            q = GB + 4 * i
            ops = []
            if i % 4 == 0:
                t = SM + 5
                chk = (f'v_bitop3_b32 {v(t)}, {v(q+3)}, {v(q+7)}, {v(vTAGV)} bitop3:0x7e\n'
                       f'    v_bitop3_b32 {v(t+1)}, {v(q+11)}, {v(q+15)}, {v(vTAGV)} bitop3:0x7e\n'
                       f'    v_or_b32 {v(t)}, {v(t)}, {v(t+1)}\n'
                       f'    v_cmp_ne_u32 vcc, 0, {v(t)}')
                ops = [(lambda p: (p.wait(vm=R[('gc', i + 3)]), self.retry(p, chk, [], '\n    '.join(gld(k) for k in range(i, i + 4)), name=f'g{i//4}'),
                                   self.stamp(p, f'gc{i//4}')), 24)]
            ops.append((f'v_mfma_f32_16x16x16_bf16 {v(SM,4)}, {v(ID,2)}, {v(q,2)}, {v(SM,4) if i else 0}', 16))
            ops.append((f'v_add_f32 {v(SM+4)}, {v(SM+4)}, {v(q+2)}' if i else f'v_mov_b32 {v(SM+4)}, {v(q+2)}', 4))
            return ops
        vKW, vZW, vA0, vA1 = vT + 60, vT + 61, vT + 62, vT + 63
        addr = f"""s_lshr_b32 s{sT2}, s{sW}, 1
              s_lshl_b32 s{sT2}, s{sT2}, 10
              s_and_b32 s{sT1}, s{sW}, 1
              s_lshl3_add_u32 s{sT2}, s{sT1}, s{sT2}
              v_add_u32 {v(vKW)}, s{sT2}, {v(vL16)}
              v_bfe_u32 {v(vA0)}, {v(vLANE)}, 2, 1
              v_lshlrev_b32 {v(vA0)}, 4, {v(vA0)}
              v_bfe_u32 {v(vA1)}, {v(vLANE)}, 3, 1
              v_lshl_add_u32 {v(vA0)}, {v(vA1)}, 3, {v(vA0)}
              v_bfe_u32 {v(vA1)}, {v(vLANE)}, 4, 1
              v_lshl_add_u32 {v(vA0)}, {v(vA1)}, 7, {v(vA0)}
              v_lshrrev_b32 {v(t0)}, 5, {v(vLANE)}
              v_lshl_add_u32 {v(vA0)}, {v(t0)}, 10, {v(vA0)}
              v_and_b32 {v(vA1)}, 3, {v(vLANE)}
              v_lshl_add_u32 {v(vA0)}, {v(vA1)}, 1, {v(vA0)}
              s_lshl_b32 s{sT1}, s{sW}, 5
              v_add_u32 {v(vZW)}, s{sT1}, {v(vA0)}
              v_lshlrev_b32 {v(vA0)}, 4, {v(t0)}
              v_lshl_add_u32 {v(vA0)}, {v(vA1)}, 5, {v(vA0)}
              v_add_u32 {v(vA0)}, 2048, {v(vA0)}
              v_add_u32 {v(vA1)}, 128, {v(vA0)}
              v_cndmask_b32 {v(vA0)}, {v(vA0)}, {v(vL16)}, s[{sSEL}:{sSEL+1}]
              v_cndmask_b32 {v(vA1)}, {v(vL16)}, {v(vA1)}, s[{sSEL}:{sSEL+1}]
              v_and_b32 {v(t0)}, 1, {v(vLANE)}
              v_lshlrev_b32 {v(t0)}, 4, {v(t0)}
              v_mov_b32 {v(t1)}, 0x3f80
              v_lshlrev_b32 {v(t0)}, {v(t0)}, {v(t1)}
              s_mov_b32 s{sSEL}, 0x00300003
              s_mov_b32 s{sSEL+1}, 0x30000300
              v_cndmask_b32 {v(ID)}, 0, {v(t0)}, s[{sSEL}:{sSEL+1}]
              s_lshl_b64 s[{sSEL}:{sSEL+1}], s[{sSEL}:{sSEL+1}], 2
              v_cndmask_b32 {v(ID+1)}, 0, {v(t0)}, s[{sSEL}:{sSEL+1}]"""
        nin = c.nin

        def section(p):
            self.stamp(p, 'sec')
            for i in range(nin, 16):
                for o in sums(i):
                    if callable(o[0]): o[0](p)
                    else: p(o[0])
            p(f"""v_cvt_pk_bf16_f32 {v(SM+4)}, {v(SM+4)}, {v(SM+4)}
                  ds_write_b16 {v(vZW)}, {v(SM+4)} offset:{SCR + 2048}
                  s_nop 4
                  v_cvt_pk_bf16_f32 {v(SM)}, {v(SM)}, {v(SM+1)}
                  v_cvt_pk_bf16_f32 {v(SM+1)}, {v(SM+2)}, {v(SM+3)}
                  ds_write_b64 {v(vKW)}, {v(SM,2)} offset:{SCR}
                  s_waitcnt lgkmcnt(0)
                  s_barrier""")
            for hd in range(4):
                R[('tb', hd)] = p(f'ds_read_b128 {v(KV+4*hd,4)}, {v(vA1 if hd%2 else vA0)} offset:{SCR + (hd//2)*1024}')
            self.stamp(p, 'gath')
            for hd in range(4):
                p.wait(lg=R[('tb', hd)])
                p(f'{MF} {v(GB+16*hd,16)}, {v(KV+4*hd,4)}, {v(PK[hd//2]+4*(hd%2),4)}, 0')
        gl[SEC]['pre'].append(section)
        ops = []
        for hd in range(4):
            D = GB + 16 * hd
            num, den = (D, D + 8) if hd % 2 == 0 else (D + 8, D)
            ops += [(f'v_add_f32 {v(den)}, {v(den)}, {v(den+1)}', 4), (f'v_add_f32 {v(den+2)}, {v(den+2)}, {v(den+3)}', 4),
                    (f'v_add_f32 {v(den)}, {v(den)}, {v(den+2)}', 4),
                    (f'v_add_f32 {v(den)}, {f32(1e-6)}, {v(den)}', 4), (f'v_rcp_f32 {v(den)}, {v(den)}', 8), ('s_nop 0', 4)]
            for i in range(8):
                ops.append((f'v_mul_f32 {v(num+i)}, {v(den)}, {v(num+i)}', 4))
            for i in range(4):
                ops.append((f'v_cvt_pk_bf16_f32 {v(KV+4*hd+i)}, {v(num+2*i)}, {v(num+2*i+1)}', 4))
            ops.append(('MEM', lambda p, hd=hd: R.__setitem__('ost', p(
                f'buffer_store_dwordx4 {v(KV+4*hd,4)}, {self.haddr(7 + hd // 2, 0, hd % 2)}'))))
        so = self.spread(gl, ops, SEC + 1, SEC + c.ospan)
        gl[so]['valu'].append(lambda p: self.stamp(p, 'ost'))
        if 7 not in c.sent:
            self.flag_at(gl, self.adv(gT, so, c.flc), R, 'ost', WS_FO >> 16)
        nw = 8 if c.w64 else 4
        for n, (s, k) in enumerate((s, k) for s in range(5, 9) for k in range(nw)):
            gi = WR0 + n * (WR1 - WR0) // (4 * nw)
            txt = f'ds_write_b64 {v(vSW)}, {a(araw[s]+2*k,2)} offset:{self.w2off(s) + (k//2)*1024 + (k%2)*8}' if c.w64 else \
                  f'ds_write_b128 {v(vSW)}, {a(araw[s]+4*k,4)} offset:{self.w2off(s) + k*1024}'
            gl[gi]['mem'].append(lambda p, s=s, txt=txt: R.__setitem__(('ww', s), p(txt)))
            gl[gi]['cost'] = gl[gi].get('cost', 0) + (20 if c.w64 else 44)
            if k == nw - 1:
                for b in loaded:
                    if areg[b] in (araw[s], araw[s] + 8):
                        g1 = pos[('first', ('h',) + b)]
                        assert g1 > gi, (b, g1, gi)
                        gl[g1]['pre'].insert(0, lambda p, s=s: p.wait(lg=R[('ww', s)]))
        self.use_waits(gl, P2, first, R, pos, loaded, areg)
        self.norm_spread()
        self.spread(gl, lines(setup), 62, 65)
        self.spread(gl, lines(addr), 148, 161)
        self.spread(gl, self.phi_ops(X[0], PK[0], Z[0]), 66, 95)
        self.spread(gl, self.phi_ops(X[1], PK[1], Z[1]), 96, 127)
        self.spread(gl, self.setup_p2(), 162, 164)
        self.spread(gl, self.phi_ops(X[4], PK[0]), 163, 188)
        self.spread(gl, self.phi_ops(X[5], PK[1]) + [o for i in range(nin) for o in sums(i)], 195, SEC - 1)
        self.spread(gl, self.resid_ops(R), NS - 40, NS - 4)
        self.plan_send(gl, NS, N, R)
        stamps = {32 * g + 31: f'g{g}' for g in range(5)}
        stamps.update({P2 - 1: 'p1end'})
        stamps.update({P2 + 16 * k + 15: f'pc{k}' for k in range(8)})
        self.run_stream(p, ent, gl, stamps, hold=self.hold)
        self.finish(p, R)

    def finish(self, p, R):
        c = self.c
        self.stamp(p, 'p2end')
        K, S = ACC2
        slot = [0, 1, 2, 4, 5, 6, 8, 9]
        RV = GB + 16
        if 'rx' not in R:
            p('s_nop 9')
            for o in self.send_ops(R):
                if o[0] == 'MEM': o[1](p)
                else: p(o[0])
        else:
            p('s_nop 11')
        for i in range(16):
            p(f'v_fmac_f32 {v(vU+i)}, s{sLN2}, {v(K+i)}')
        if 'rx' not in R:
            p(f's_waitcnt vmcnt({c.rxw})')
            self.stamp(p, 'sent')
            for x in self.rx_loads():
                R['rx'] = p(x)
        p.wait(vm=R['rx'])
        t = vTMP
        self.retry(p, f'v_bitop3_b32 {v(t)}, {v(RV+3)}, {v(RV+7)}, {v(vTAGV)} bitop3:0x7e\n'
                      f'    v_xor_b32 {v(t+1)}, {v(RV+11)}, {v(vTAGV)}\n'
                      f'    v_or_b32 {v(t)}, {v(t)}, {v(t+1)}\n'
                      f'    v_cmp_ne_u32 vcc, 0, {v(t)}', [], '\n    '.join(self.rx_loads()), name='rx')
        self.stamp(p, 'recv')
        T = GB + 32
        for m in range(2):
            for i in range(4 * m, 4 * m + 4):
                p(f'v_lshlrev_b32 {v(T+2*i)}, 16, {v(RV+slot[i])}')
                p(f'v_and_b32 {v(T+2*i+1)}, s{sMASK}, {v(RV+slot[i])}')
            for i in range(8 * m, 8 * m + 8):
                p(f'v_fmac_f32 {v(vU+i)}, s{sLN2}, {v(T+i)}')
            for i in range(4 * m, 4 * m + 4):
                p(f'v_cvt_pk_bf16_f32 {v(vRES+i)}, {v(vU+2*i)}, {v(vU+2*i+1)}')
            if c.outl:
                for k in range(2 * m, 2 * m + 2):
                    p(f'ds_write_b64 {v(vWL)}, {v(vRES+2*k,2)} offset:{self.outs + 16*k}')
                continue
            p('s_nop 1')
            for d in range(2):
                p(f'v_permlane32_swap_b32 {v(vRES+4*m+d)}, {v(vRES+4*m+2+d)}')
            p(f'buffer_store_dwordx4 {v(vRES+4*m,4)}, {v(vRO)}, {srd(SRD_OUT)}, 0 offen offset:{32*m}' + (' sc1' if c.outsc1 else ''))
        if c.outl:
            tk = [p(f'ds_read_b128 {v(T+4*m,4)}, {v(vWR)} offset:{self.outs + 16*80*m}') for m in range(2)]
            for m in range(2):
                p.wait(lg=tk[m])
                p(f'buffer_store_dwordx4 {v(T+4*m,4)}, {v(vRO)}, {srd(SRD_OUT)}, {f"s{sFLAG}" if m else 0} offen' + (' sc1' if c.outsc1 else ''))
        if c.stamps:
            p('s_waitcnt vmcnt(0)')
            p.ins.append(self.raw(f'{self.clk} s[0:1]'))
            p.ins.append(self.raw('s_memrealtime s[100:101]'))
            p('s_waitcnt lgkmcnt(0)')
            p(f'''s_lshl_b32 s{sT0}, s2, 2
                  s_add_u32 s{sT0}, s{sT0}, s{sW}
                  s_lshl_b32 s{sT0}, s{sT0}, 7
                  s_add_u32 s{sT0}, s{sT0}, {WS_STAMP}''')
            regs = [98, 100, 96] + [88 + 2 * i for i in range(4)] + [sSTAMP + 2 * i for i in range(9)] + [0, 0]
            for n, r in enumerate(regs):
                p(f'v_mov_b32 {v(vTMP)}, s{r}')
                if n == 0: p('s_mov_b64 exec, 1')
                p(f'buffer_store_dword {v(vTMP)}, {v(vFLG)}, {srd(SRD_WS)}, s{sT0} offen offset:{4*n}')
        if c.diag:
            n = self.nlab; self.nlab += 1
            p('s_waitcnt vmcnt(0)')
            self.stamp(p, 'end')
            if c.dxcd >= 0:
                for l in ['s_and_b32 s97, s2, 7', f's_cmp_lg_u32 s97, {c.dxcd}', f's_cbranch_scc1 L_pade{n}']:
                    p.ins.append(self.raw(l))
            for l in ['s_waitcnt lgkmcnt(0)', 's_sub_u32 s96, s96, s98', 's_add_u32 s96, s96, 4000', 's_min_u32 s96, s96, 20000',
                      's_mov_b32 s97, 0', f'L_pad{n}:', 's_memrealtime s[100:101]', 's_waitcnt lgkmcnt(0)',
                      's_add_u32 s97, s97, 1', 's_cmp_gt_u32 s97, 100000', f's_cbranch_scc1 L_pade{n}',
                      's_sub_u32 s100, s100, s98', 's_cmp_lt_u32 s100, s96', f's_cbranch_scc1 L_pad{n}', f'L_pade{n}:']:
                p.ins.append(self.raw(l))
        p('s_endpgm')

    @staticmethod
    def sizes(L):
        import subprocess, re, tempfile
        isins = lambda l: l.strip() and not l.strip().endswith(':') and not l.strip().startswith(('.', ';'))
        d = tempfile.mkdtemp()
        extra = '\n'.join(f'L_warm{k}:' for k in range(8))
        open(d + '/a.s', 'w').write('.amdgcn_target "amdgcn-amd-amdhsa--gfx950"\n.text\n' +
                                    '\n'.join(l for l in L if not l.strip().startswith('.p2align')) + f'\n{extra}\nL_codeend:\ns_endpgm\n')
        subprocess.run(['clang', '-x', 'assembler', '-target', 'amdgcn-amd-amdhsa', '-mcpu=gfx950', '-c', d + '/a.s', '-o', d + '/a.o'], check=True)
        o = subprocess.run(['llvm-objdump', '-d', '--mcpu=gfx950', d + '/a.o'], capture_output=True, text=True).stdout
        addr = [int(m.group(1), 16) for m in re.finditer(r'// ([0-9A-F]{12}):', o)]
        out, k = [], 0
        for l in L:
            if isins(l):
                out.append(addr[k + 1] - addr[k]); k += 1
            else:
                out.append(4 if l.strip().startswith('.p2align') else 0)
        assert k + 1 == len(addr)
        return out

    def layout(self, head, ffn, tail_f, attn, tail_a):
        parts = [head.split('\n'), ffn.split('\n'), '\n'.join(tail_f).split('\n'), attn.split('\n'), '\n'.join(tail_a).split('\n')]
        if not self.c.pages:
            return '\n'.join(sum(parts, []))
        L = sum(parts, [])
        part = sum(([n] * len(x) for n, x in enumerate(parts)), [])
        sz = self.sizes(L)
        big = [n for n, l in enumerate(L) if '32x32x16' in l]
        nxt = {a_: b_ for a_, b_ in zip(big, big[1:] + [len(L)])}
        breaks, off, start = {}, 0x400, 0
        n = 0
        while n < len(L):
            if part[n] == 3 and part[n - 1] == 2:
                breaks[n] = 'new'; off = 8
            if part[n] in (0, 1, 3) and off + sz[n] > 4096 - 8:
                cand, o, m = [], off, n
                while off - o < 500:
                    m -= 1; o -= sz[m]
                    if m in nxt and m + 1 < n:
                        cand.append((sum(1 for q in range(m, nxt[m]) if sz[q]), -m))
                b = -min(cand)[1] + 1 if cand else n - 1
                breaks[b] = 'jump'; n = b; off = 8
            off += sz[n]; n += 1
        pts = sorted(breaks)
        chain = {1: [b for b in pts if part[b] in (0, 1)], 0: [b for b in pts if part[b] in (0, 3)]}
        out = []
        for n, l in enumerate(L):
            if n in breaks:
                if breaks[n] == 'jump':
                    out.append(f'    s_branch L_pg{n}')
                out.append('.p2align 12')
                for role in (0, 1):
                    if n in chain[role]:
                        k = chain[role].index(n)
                        if k < 4:
                            out.append(f'L_warm{4*role+k}:')
                        out.append(f'L_st{role}_{k}:')
                        out.append(f'    s_branch L_st{role}_{k+4}' if k + 4 < len(chain[role]) else '    s_branch L_back')
                    else:
                        out.append('    s_nop 0')
                out.append(f'L_pg{n}:')
            out.append(l)
        assert min(len(x) for x in chain.values()) >= 4
        return '\n'.join(out)

    def build(self):
        head = Prog()
        self.prologue(head)
        bt = dict(self.btok)
        pf = head.fork()
        self.spn = []
        self.ffn(pf)
        spf, self.spn = self.spn, []
        tail_f, self.tail = self.tail, []
        pa = head.fork()
        pa('L_attn:')
        self.btok = bt
        self.attn(pa)
        errs = pf.check('ffn') + pa.check('attn')
        for e in dict.fromkeys(errs):
            print('CHECK', e, file=sys.stderr)
        ref = open(f'cdna_kernels/{NAME}.s.ref').read().split('\n')
        hdr = [l for l in ref if l.startswith(';') and '@launch' not in l and 'Override' not in l and 'grid=ceil' not in l]
        if self.c.spins:
            hdr.append('; spins: ' + ','.join(self.spn) + ' ' + ','.join(spf))
        if self.c.stamps:
            hdr.append('; stamps: ' + ','.join(self.c.stamps) + (' rt' if self.c.rt else ''))
        out = hdr + ['; @launch grid=(256,1,1) block=(256,1,1) lds=163840',
                     '.amdgcn_target "amdgcn-amd-amdhsa--gfx950"', '.text', '.p2align 12', f'.globl {NAME}_kernel', '.p2align 8',
                     f'.type {NAME}_kernel,@function', f'{NAME}_kernel:',
                     self.layout(head.text(), pf.text(), tail_f, pa.text(), self.tail), 'L_codeend:', '    s_endpgm',
                     '.section .rodata,"a"', '.p2align 6', f'.amdhsa_kernel {NAME}_kernel',
                     '  .amdhsa_next_free_vgpr 512', '  .amdhsa_next_free_sgpr 102', '  .amdhsa_accum_offset 256',
                     '  .amdhsa_group_segment_fixed_size 0', '  .amdhsa_kernarg_size 72', '  .amdhsa_user_sgpr_count 2',
                     '  .amdhsa_user_sgpr_kernarg_segment_ptr 1', '  .amdhsa_system_sgpr_workgroup_id_x 1',
                     '.end_amdhsa_kernel', '']
        return '\n'.join(out), len(errs)


if __name__ == '__main__':
    kw = {}
    outp = f'cdna_kernels/{NAME}.s'
    for arg in sys.argv[1:]:
        k, _, val = arg.partition('=')
        if k == 'out':
            outp = val
        elif k == 'stamps':
            kw[k] = val.split(',')
        elif k == 'diag':
            kw[k] = val
        elif ',' in val:
            kw[k] = tuple(int(x) for x in val.split(','))
        else:
            kw[k] = int(val)
    g = Gen(Cfg(**kw))
    txt, nerr = g.build()
    open(outp, 'w').write(txt)
    print('wrote', outp, len(txt), 'bytes; check errors:', nerr)
```
